```python
import torch

def _softmax(x, axis=-1):
    return torch.softmax(x, dim=axis)
def _gelu(x):
    return torch.nn.functional.gelu(x, approximate="tanh")
def _silu(x):
    return torch.nn.functional.silu(x)
def _sigmoid(x):
    return torch.sigmoid(x)
def _layernorm(x, axis=-1, eps=1e-5):
    m = x.mean(dim=axis, keepdim=True)
    v = x.var(dim=axis, keepdim=True, unbiased=False)
    return (x - m) / torch.sqrt(v + eps)
def _scatter_add(tgt, idx, src, axis=0):
    return tgt.clone().index_add_(axis, idx, src)
def _segment_sum(src, seg, n):
    out = torch.zeros((n,) + src.shape[1:], dtype=src.dtype)
    return out.index_add_(0, seg, src)
def _pad(x, pw):
    flat = tuple(v for pair in reversed(pw) for v in pair)
    return torch.nn.functional.pad(x, flat)

kernel_name = 'recurrent_scan__ssm_conv_h3__glu_gated_bilinear__prompt'

def setup_inputs():

    _w = (lambda a: (lambda t: t.to(torch.bfloat16) if t.is_floating_point() else t)(torch.as_tensor(a)))
    def _A_setup():
        B, S, D = 1, 2048, 512
        ks = 4
        return {
            "q": _w((lambda *s: torch.randn(*s, dtype=torch.bfloat16) * 0.05)(B, S, D)),
            "k": _w((lambda *s: torch.randn(*s, dtype=torch.bfloat16) * 0.8)(B, S, D)),
            "v": _w((lambda *s: torch.randn(*s, dtype=torch.bfloat16) * 0.8)(B, S, D)),
            "shift_k": _w((lambda *s: torch.randn(*s, dtype=torch.bfloat16) * 0.8)(D, ks) * 0.5),
            "ssm_k": _w((lambda *s: torch.randn(*s, dtype=torch.bfloat16) * 0.8)(D, S) * (1.0 / S ** 0.5)),
            "ssm_D": _w((lambda *s: torch.randn(*s, dtype=torch.bfloat16) * 0.8)(D)),
        }
    _A_in = _A_setup()

    def _B_setup():
        B, S, D, F = 1, 2048, 512, 1376
        return {
            "x": _w((lambda *s: torch.randn(*s, dtype=torch.bfloat16) * 0.05)(B, S, D)),
            "w_gate": _w((lambda *s: torch.randn(*s, dtype=torch.bfloat16) * 0.2)(D, F) * (D ** -0.5)),
            "w_up": _w((lambda *s: torch.randn(*s, dtype=torch.bfloat16) * 0.2)(D, F) * (D ** -0.5)),
            "w_down": _w((lambda *s: torch.randn(*s, dtype=torch.bfloat16) * 0.2)(F, D) * (F ** -0.5)),
        }
    _B_in = _B_setup()

    return {
        "A_q": _A_in["q"],
        "A_k": _A_in["k"],
        "A_v": _A_in["v"],
        "A_shift_k": _A_in["shift_k"],
        "A_ssm_k": _A_in["ssm_k"],
        "A_ssm_D": _A_in["ssm_D"],
        "B_x": _B_in["x"],
        "B_w_gate": _B_in["w_gate"],
        "B_w_up": _B_in["w_up"],
        "B_w_down": _B_in["w_down"],
    }

def reference(A_q, A_k, A_v, A_shift_k, A_ssm_k, A_ssm_D, B_x, B_w_gate, B_w_up, B_w_down):
    def _A_ref(q, k, v, shift_k, ssm_k, ssm_D):
        B, S, D = q.shape
        ks = shift_k.shape[-1]
        k_pad = _pad(k, ((0, 0), (ks - 1, 0), (0, 0)))
        k_shift = torch.zeros_like(k)
        for t in range(ks):
            k_shift = k_shift + k_pad[:, t:t + S, :] * shift_k[:, ks - 1 - t][None, None, :]
        kv = k_shift * v
        L = 2 * S
        kv_pad = _pad(kv, ((0, 0), (0, S), (0, 0)))
        kf_pad = _pad(ssm_k, ((0, 0), (0, S)))
        kv_f = (lambda x, axes=(-2,-1): torch.fft.rfft2(x.float(), dim=axes))(kv_pad[:, None, :, :], axes=(1, 2))
        kf_f = (lambda x, axes=(-2,-1): torch.fft.rfft2(x.float(), dim=axes))(kf_pad[:, None, :], axes=(1, 2))
        kf_f = (lambda x, *d: x.permute(*d))(kf_f, 1, 2, 0)
        y_f = kv_f * kf_f[None, :, :, :]
        y = (lambda x, s, axes=(-2,-1): torch.fft.irfft2(x, s=s, dim=axes).to(torch.bfloat16))(y_f, (1, L), axes=(1, 2))[:, 0, :S, :]
        y = y + kv * ssm_D[None, None, :]
        return q * y

    def _B_ref(x, w_gate, w_up, w_down):
        g = torch.einsum("bsd,df->bsf", x, w_gate)
        u = torch.einsum("bsd,df->bsf", x, w_up)
        h = g * u
        return torch.einsum("bsf,fd->bsd", h, w_down)

    x = A_q
    xn = _layernorm(x, axis=-1)
    s = _A_ref(xn, A_k, A_v, A_shift_k, A_ssm_k, A_ssm_D)
    g = _silu(_B_ref(xn, B_w_gate, B_w_up, B_w_down))
    return x + s * g
```

```python
NAME = "recurrent_scan__ssm_conv_h3__glu_gated_bilinear__prompt"
HDR = open("cdna_kernels/%s.s.ref" % NAME).read().split("; Override launch")[0]
KA = dict(q=0,k=8,v=16,shk=24,ssmk=32,ssmD=40,bx=48,wg=56,wu=64,wd=72,out=80,dbg=88,ws=96)
SZ = dict(q=2097152,k=2097152,v=2097152,shk=4096,ssmk=2097152,ssmD=1024,bx=2097152,wg=1409024,wu=1409024,wd=1409024,out=2097152,dbg=256,ws=268435456)

class K:
    def __init__(self, name, grid, block, lds=0, vgpr=256, agpr=0, sgpr=102):
        self.name=name; self.grid=grid; self.block=block; self.lds=lds
        self.vgpr=vgpr; self.agpr=agpr; self.sgpr=sgpr
        self.L=[]
    def __call__(self, s):
        for l in s.split("\n"):
            l=l.strip()
            if l: self.L.append(("" if l.endswith(":") else "    ")+l)
    def srd(self, s, name, size=None):
        self(f"s_load_dwordx2 s[{s}:{s+1}], s[0:1], {KA[name]}")
        self(f"s_mov_b32 s{s+2}, {size or SZ[name]}")
        self(f"s_mov_b32 s{s+3}, 0x20000")
    def text(self):
        acc=(self.vgpr+3)//4*4
        nfv = acc+self.agpr if self.agpr else self.vgpr
        body="\n".join(self.L)
        return f""".text
.globl {self.name}
.p2align 8
.type {self.name},@function
{self.name}:
{body}
    s_endpgm
.section .rodata,"a"
.p2align 6
.amdhsa_kernel {self.name}
  .amdhsa_next_free_vgpr {nfv}
  .amdhsa_next_free_sgpr {self.sgpr}
  .amdhsa_accum_offset {acc}
  .amdhsa_group_segment_fixed_size 0
  .amdhsa_kernarg_size 104
  .amdhsa_user_sgpr_count 2
  .amdhsa_user_sgpr_kernarg_segment_ptr 1
  .amdhsa_system_sgpr_workgroup_id_x 1
.end_amdhsa_kernel
"""
def emit(kernels, path, order=None):
    order = order or kernels
    out = HDR
    if len(order)==1 and order[0].name==NAME+"_kernel":
        k=order[0]
        out += f"; @launch grid=({k.grid},1,1) block=({k.block},1,1) lds={k.lds}\n"
    else:
        for k in order:
            out += f"; @launch kernel={k.name} grid=({k.grid},1,1) block=({k.block},1,1) lds={k.lds}\n"
    out += '.amdgcn_target "amdgcn-amd-amdhsa--gfx950"\n'
    for k in kernels: out += k.text()
    open(path,"w").write(out)
```

```python
from asmlib import *
import sys
XN=0; KV=4<<20; H=8<<20
def wave_sum(a, v, tmp, addr):
    for m in (1,2,4,8,16,32):
        a(f"v_xor_b32 v{tmp}, {m*4}, v{addr}")
        a(f"ds_bpermute_b32 v{tmp}, v{tmp}, v{v}")
        a("s_waitcnt lgkmcnt(0)")
        a(f"v_add_f32 v{v}, v{v}, v{tmp}")
def unpack8(a, dst, src):
    for i in range(4):
        a(f"v_lshlrev_b32 v{dst+2*i}, 16, v{src+i}")
        a(f"v_and_b32 v{dst+2*i+1}, 0xffff0000, v{src+i}")
def k0():
    a=K("n0_kernel",2048,64,vgpr=128)
    a("s_cmp_ge_u32 s2, 2048\ns_cbranch_scc1 n0_end")
    a.srd(4,"q"); a.srd(8,"k"); a.srd(12,"v"); a.srd(16,"shk"); a.srd(20,"ws")
    a("s_lshl_b32 s3, s2, 10\nv_lshlrev_b32 v1, 4, v0\nv_add_u32 v1, s3, v1\nv_lshlrev_b32 v2, 2, v0")
    a("s_waitcnt lgkmcnt(0)")
    a("buffer_load_dwordx4 v[4:7], v1, s[4:7], 0 offen")
    a("buffer_load_dwordx4 v[8:11], v1, s[12:15], 0 offen")
    for j in range(4):
        a(f"v_subrev_u32 v3, {1024*j}, v1")
        a(f"buffer_load_dwordx4 v[{12+4*j}:{15+4*j}], v3, s[8:11], 0 offen")
    a("v_lshlrev_b32 v3, 6, v0")
    for j in range(4):
        a(f"buffer_load_dwordx4 v[{28+4*j}:{31+4*j}], v3, s[16:19], 0 offen offset:{16*j}")
    a("s_waitcnt vmcnt(0)")
    unpack8(a,48,4)
    a("v_mov_b32 v44, 0")
    for i in range(8): a(f"v_add_f32 v44, v44, v{48+i}")
    wave_sum(a,44,45,2)
    a("v_mul_f32 v44, 0x3b000000, v44")
    a("v_mov_b32 v46, 0")
    for i in range(8):
        a(f"v_sub_f32 v{48+i}, v{48+i}, v44"); a(f"v_fmac_f32 v46, v{48+i}, v{48+i}")
    wave_sum(a,46,45,2)
    a("v_mul_f32 v46, 0x3b000000, v46\nv_add_f32 v46, 0x3727c5ac, v46\nv_rsq_f32 v46, v46\ns_nop 0")
    for i in range(8): a(f"v_mul_f32 v{48+i}, v{48+i}, v46")
    a("v_lshlrev_b32 v3, 1, v1")
    a("buffer_store_dwordx4 v[48:51], v3, s[20:23], 0 offen\nbuffer_store_dwordx4 v[52:55], v3, s[20:23], 0 offen offset:16")
    unpack8(a,56,8)
    for j in range(4): unpack8(a,64+8*j,12+4*j)
    for i in range(8):
        s=28+2*i
        a(f"v_lshlrev_b32 v100, 16, v{s}\nv_and_b32 v101, 0xffff0000, v{s}\nv_lshlrev_b32 v102, 16, v{s+1}\nv_and_b32 v103, 0xffff0000, v{s+1}")
        a(f"v_mul_f32 v104, v{64+i}, v100\nv_fmac_f32 v104, v{72+i}, v101\nv_fmac_f32 v104, v{80+i}, v102\nv_fmac_f32 v104, v{88+i}, v103")
        a(f"v_mul_f32 v104, v104, v{56+i}\nv_cvt_pk_bf16_f32 v104, v104, v104\nv_lshlrev_b32 v{108+i}, 16, v104")
    a(f"s_mov_b32 s24, {KV}")
    a("buffer_store_dwordx4 v[108:111], v3, s[20:23], s24 offen\nbuffer_store_dwordx4 v[112:115], v3, s[20:23], s24 offen offset:16")
    a("n0_end:")
    return a
def k1():
    a=K("n1_kernel",2048*6,256,vgpr=32)
    a("s_cmp_ge_u32 s2, 12288\ns_cbranch_scc1 n1_end")
    a.srd(4,"wg"); a.srd(8,"wu"); a.srd(20,"ws")
    a("s_and_b32 s24, s2, 2047\ns_lshr_b32 s25, s2, 11\ns_lshl_b32 s25, s25, 8\nv_add_u32 v1, s25, v0")
    a("s_movk_i32 s26, 1376\nv_cmp_gt_u32 vcc, s26, v1\nv_lshlrev_b32 v2, 1, v1\ns_lshl_b32 s27, s24, 11\nv_mov_b32 v3, s27")
    a("s_mul_i32 s30, s24, 5504\nv_lshlrev_b32 v9, 2, v1\nv_add_u32 v9, s30, v9")
    a("s_waitcnt lgkmcnt(0)")
    a("s_and_saveexec_b64 s[32:33], vcc\ns_cbranch_execz n1_end")
    a("v_mov_b32 v4, 0\nv_mov_b32 v5, 0\ns_mov_b32 s28, 0\ns_mov_b32 s29, 0")
    a("n1_loop:")
    a("buffer_load_ushort v6, v2, s[4:7], s28 offen\nbuffer_load_ushort v7, v2, s[8:11], s28 offen\nbuffer_load_dword v8, v3, s[20:23], s29 offen")
    a("s_waitcnt vmcnt(0)\nv_lshlrev_b32 v6, 16, v6\nv_lshlrev_b32 v7, 16, v7\nv_fmac_f32 v4, v6, v8\nv_fmac_f32 v5, v7, v8")
    a("s_add_u32 s28, s28, 2752\ns_add_u32 s29, s29, 4\ns_cmp_lt_u32 s29, 2048\ns_cbranch_scc1 n1_loop")
    a(f"v_mul_f32 v4, v4, v5\ns_mov_b32 s31, {H}\nbuffer_store_dword v4, v9, s[20:23], s31 offen")
    a("n1_end:")
    return a
def k2():
    a=K("n2_kernel",4096,256,vgpr=32)
    a("s_cmp_ge_u32 s2, 4096\ns_cbranch_scc1 n2_end")
    a.srd(4,"wd"); a.srd(8,"ssmk"); a.srd(12,"ssmD"); a.srd(16,"q"); a.srd(20,"ws"); a.srd(36,"out")
    a("s_lshr_b32 s24, s2, 1\ns_and_b32 s25, s2, 1\ns_lshl_b32 s25, s25, 8\nv_add_u32 v1, s25, v0")
    a("v_lshlrev_b32 v2, 1, v1")
    a(f"s_mul_i32 s30, s24, 5504\ns_add_u32 s30, s30, {H}\nv_mov_b32 v3, s30")
    a("s_waitcnt lgkmcnt(0)")
    a("v_mov_b32 v4, 0\ns_mov_b32 s28, 0\ns_mov_b32 s29, 0")
    a("n2_l1:")
    a("buffer_load_ushort v6, v2, s[4:7], s28 offen\nbuffer_load_dword v8, v3, s[20:23], s29 offen")
    a("s_waitcnt vmcnt(0)\nv_lshlrev_b32 v6, 16, v6\nv_fmac_f32 v4, v6, v8")
    a("s_add_u32 s28, s28, 1024\ns_add_u32 s29, s29, 4\ns_cmp_lt_u32 s29, 5504\ns_cbranch_scc1 n2_l1")
    a("v_lshlrev_b32 v10, 12, v1\nv_lshlrev_b32 v11, 2, v1\nv_mov_b32 v5, 0\ns_mov_b32 s28, 0")
    a(f"s_lshl_b32 s29, s24, 11\ns_mov_b32 s31, s29\ns_add_u32 s29, s29, {KV}\ns_mov_b32 s34, s29")
    a("n2_l2:")
    a("buffer_load_ushort v6, v10, s[8:11], s28 offen\nbuffer_load_dword v8, v11, s[20:23], s29 offen")
    a("s_waitcnt vmcnt(0)\nv_lshlrev_b32 v6, 16, v6\nv_fmac_f32 v5, v6, v8")
    a(f"s_add_u32 s28, s28, 2\ns_sub_u32 s29, s29, 2048\ns_cmp_ge_u32 s29, {KV}\ns_cbranch_scc1 n2_l2")
    a("buffer_load_ushort v6, v2, s[12:15], 0 offen\nbuffer_load_dword v8, v11, s[20:23], s34 offen\nbuffer_load_dword v12, v11, s[20:23], s31 offen")
    a("s_lshl_b32 s35, s24, 10\nbuffer_load_ushort v13, v2, s[16:19], s35 offen")
    a("s_waitcnt vmcnt(0)\nv_lshlrev_b32 v6, 16, v6\nv_fmac_f32 v5, v6, v8\nv_mul_f32 v5, v5, v12\nv_lshlrev_b32 v13, 16, v13")
    a("v_mul_f32 v14, 0xbfb8aa3b, v4\nv_exp_f32 v14, v14\ns_nop 0\nv_add_f32 v14, 1.0, v14\nv_rcp_f32 v14, v14\ns_nop 0\nv_mul_f32 v14, v14, v4")
    a("v_fmac_f32 v13, v5, v14\nv_cvt_pk_bf16_f32 v13, v13, v13\nbuffer_store_short v13, v2, s[36:39], s35 offen")
    a("n2_end:")
    return a
def probe(name, buf, n, stride):
    a=K(name,1,64,vgpr=16)
    a(f"s_cmp_ge_u32 s2, 1\ns_cbranch_scc1 {name}_end")
    a.srd(4,buf)
    a(f"v_mov_b32 v1, 0\ns_mov_b32 s28, 0\ns_waitcnt lgkmcnt(0)")
    a(f"{name}_l:")
    a("buffer_load_dword v2, v1, s[4:7], s28 offen\ns_waitcnt vmcnt(0)")
    a(f"s_add_u32 s28, s28, {stride}\ns_cmp_lt_u32 s28, {n*stride}\ns_cbranch_scc1 {name}_l")
    a(f"{name}_end:")
    return a
if __name__=="__main__":
    ks=[k0(),k1(),k2()]
    emit(ks,"naive.s")
    emit([probe("p_kernel","bx",4096,512)]+ks,"naive_pbx.s")
    emit([probe("p_kernel","q",4096,512)]+ks,"naive_pq.s")
    emit([probe("p_kernel","wd",4096,256)]+ks,"naive_pwd.s")
    emit([probe("p_kernel","ws",4096,512)]+ks,"naive_pws.s")
    emit([probe("p_kernel","out",4096,512)]+ks,"naive_pout.s")
```

```python
import re
REG = re.compile(r'\b([vsa])\[(\d+):(\d+)\]|\b([vsa])(\d+)\b|\b(vcc|exec|m0)\b')
TRANS = ("v_exp_f32","v_log_f32","v_rcp_f32","v_rsq_f32","v_sqrt_f32","v_sin_f32","v_cos_f32")
def regs(tok):
    out=set()
    for m in REG.finditer(tok):
        if m.group(1): out |= {(m.group(1),i) for i in range(int(m.group(2)),int(m.group(3))+1)}
        elif m.group(4): out.add((m.group(4),int(m.group(5))))
        else: out.add((m.group(6),0))
    return out
class I:
    def __init__(s, line):
        s.line=line; t=line.strip().split(";")[0].strip()
        s.label = t.endswith(":"); s.op=""; s.w=set(); s.r=set(); s.cls=""; s.states=1
        s.srcC=set(); s.data=set(); s.passes=0; s.dpp=False
        if s.label or not t or t.startswith("."):
            s.states=0; s.cls="none"; return
        p=t.split(None,1); s.op=op=p[0]; rest=p[1] if len(p)>1 else ""
        ops=[x.strip() for x in rest.split(",")]
        if op=="s_nop": s.cls="nop"; s.states=int(rest,0)+1; return
        if op.startswith("v_mfma"):
            s.cls="mfma"; s.w=regs(ops[0]); s.r=regs(ops[1])|regs(ops[2])|regs(ops[3]); s.srcC=regs(ops[3]); s.ab=regs(ops[1])|regs(ops[2])
            s.passes = 8 if "32x32x16" in op else 4
        elif op.startswith("v_"):
            s.cls="valu"; s.dpp = ("row_" in rest or "quad_perm" in rest or "wave_" in rest)
            s.w=regs(ops[0]); s.r=set()
            for o in ops[1:]: s.r|=regs(o)
            if op.startswith(("v_fmac","v_dot2c","v_permlane","v_writelane")) or s.dpp: s.r|=regs(ops[0])
            if op.startswith("v_permlane"): s.w|=regs(ops[1])
            if op.startswith(("v_add_co","v_addc_co","v_sub_co","v_subrev_co")): s.w|=regs(ops[1])
            if op.startswith("v_cmpx"): s.w.add(("exec",0))
        elif op.startswith("ds_"):
            s.cls="ds"
            if op.startswith(("ds_read","ds_bpermute","ds_swizzle")):
                s.w=regs(ops[0]);
                for o in ops[1:]: s.r|=regs(o)
                if "d16" in op: s.r|=regs(ops[0])
            else:
                for o in ops: s.r|=regs(o)
        elif op.startswith(("buffer_","global_")):
            s.cls="vmem"; lds = re.search(r'\blds\b',rest) is not None
            s.lds=lds
            if "load" in op and not lds:
                s.w=regs(ops[0]);
                for o in ops[1:]: s.r|=regs(o)
            else:
                for o in ops: s.r|=regs(o)
                if "store" in op and ("x4" in op or "x3" in op):
                    s.data = regs(ops[0]) if op.startswith("buffer_") else regs(ops[1])
                if lds: s.r.add(("m0",0))
        elif op.startswith("s_"):
            s.cls="salu"
            if op.startswith(("s_cmp","s_cbranch","s_branch","s_waitcnt","s_barrier","s_setprio","s_sleep","s_endpgm","s_bitcmp")):
                for o in ops: s.r|=regs(o)
            else:
                s.w=regs(ops[0])
                for o in ops[1:]: s.r|=regs(o)
                if "saveexec" in op: s.w.add(("exec",0))
def need(p, c):
    n=0
    vw={x for x in p.w if x[0] in "va"}; sw={x for x in p.w if x[0] in ("s","vcc")}
    if p.cls=="valu":
        if c.cls=="mfma" and vw & c.r: n=max(n,2)
        if c.cls=="valu":
            if c.dpp and vw & c.r: n=max(n,2)
            if c.op.startswith("v_permlane") and vw & c.r: n=max(n,2)
            if c.op.startswith(("v_readlane","v_readfirstlane")) and vw & c.r: n=max(n,1)
            if sw & c.r: n=max(n, 4 if c.op.startswith(("v_readlane","v_writelane")) else 2)
            if p.op.startswith(TRANS) and vw & c.r: n=max(n,1)
            if ("exec",0) in p.w: n=max(n,5)
            if ("op_sel" in p.line or "sdwa" in p.line) and vw & (c.r|c.w): n=max(n,1)
        if c.cls=="vmem" and sw & c.r: n=max(n,5)
        if c.cls=="salu" and sw & c.r: n=max(n,2)
        if c.cls=="mfma" and ("exec",0) in p.w: n=max(n,4)
    if p.cls=="salu":
        if ("m0",0) in p.w and c.cls=="vmem" and getattr(c,"lds",False): n=max(n,1)
    if p.cls=="vmem" and p.data:
        if c.cls in("valu","mfma") and p.data & c.w: n=max(n,2)
        elif p.data & c.w: n=max(n,1)
    if p.cls=="mfma":
        big = {4:8,8:12}[p.passes]
        if c.cls=="mfma":
            if vw & c.ab: n=max(n,big)
            if vw & c.srcC and not (c.srcC==p.w and c.passes==p.passes): n=max(n,{4:6,8:10}[p.passes])
            if vw & c.w and not (vw & c.srcC): n=max(n,big)
        elif c.cls in("valu","ds","vmem"):
            if vw & (c.r|c.w): n=max(n,big)
        if c.cls=="valu" and p.srcC & c.w: n=max(n,{4:3,8:7}[p.passes])
    return n
def pad(lines, verbose=False):
    out=[]; total=0
    for line in lines:
        c=I(line)
        if c.cls not in("none","nop"):
            dist=0; req=0
            for p in reversed(out):
                if dist>=20: break
                if p.cls not in("none","nop"):
                    n=need(p,c)
                    if n-dist>req: req=n-dist
                if p.op in("s_branch","s_endpgm"): break
                dist+=p.states
            while req>0:
                k=min(req,16); out.append(I(f"    s_nop {k-1}")); req-=k; total+=1
        out.append(c)
    lab={}
    for i,x in enumerate(out):
        if x.label: lab[x.line.strip()[:-1]]=i
    for i,x in enumerate(out):
        if x.op.startswith(("s_cbranch","s_branch")):
            tgt=x.line.split()[-1]
            if tgt not in lab: continue
            back=[]; d=0
            for p in reversed(out[:i+1]):
                if d>=20: break
                back.append((p,d)); d+=p.states
            f=0
            for c in out[lab[tgt]:]:
                if f>=20: break
                if c.cls not in("none","nop"):
                    for p,d in back:
                        if p.cls in("none","nop"): continue
                        n=need(p,c)
                        if n> d+f: raise Exception(f"hazard across branch {x.line.strip()}: {p.line.strip()} -> {c.line.strip()} need {n} have {d+f}")
                f+=c.states
                if c.op in("s_branch","s_endpgm"): break
    return [x.line for x in out]
```

```python
import sys
from asmlib import *
import hz

E_OFF=0; FKV=0x1000; FH=0x4000; FY=0x8000; STATS=0x10000; CSUM=0x18000
KVT=0x100000; YT=0x300000; HB=0x500000; WS_SZ=0xB00000; STAMP=0xA80000
OOB=0x40000000
SLOT=40960; UB=121344; USZ=4608; HC=UB+2*USZ; HCCH=16640; HCOPY=4160
XFLAG=120832
LDS_SZ=163840
sQ,sK,sV,sSHK,sSSM,sWG,sWU,sWD,sOUT,sWS = 4,8,12,16,20,24,28,32,36,40
sWAVE,sX,sJ,sR,sC,sW,sT0,sT1 = 44,45,46,47,48,49,50,51
sDP=52; sD=54; sRB,sFB,sROLE,sC0,sTB,sDB = 55,56,57,58,59,60
sCNT=61; sP0=62; sP1=64
sA,sB_,sCc,sDd,sE_,sF = 66,67,68,69,70,71
sSTMP=76

def srd(n): return f"s[{n}:{n+3}]"
def vr(a,n): return f"v[{a}:{a+n-1}]"

class G(K):
    def __init__(s,*a,**k):
        super().__init__(*a,**k); s.vm=[]; s.nl=0; s.nst=0
    def lab(s,x): return f"{s.name}_{x}"
    def uniq(s,x): s.nl+=1; return f"{s.name}_{x}{s.nl}"
    def iss(s,tag,txt): s(txt); s.vm.append(tag)
    def wait(s,tag):
        idx=[i for i,t in enumerate(s.vm) if t==tag]
        assert idx, tag
        n=len(s.vm)-1-idx[-1]
        assert n<=63
        s(f"s_waitcnt vmcnt({n})"); s.vm=s.vm[idx[-1]+1:]
    def wait0(s): s("s_waitcnt vmcnt(0)"); s.vm=[]
    def dma(s,tag,voff,srdn,soff,m0expr):
        s(m0expr); s.iss(tag,f"buffer_load_dwordx4 v{voff}, {srd(srdn)}, {soff} offen lds")

def gen(name, P=True, G1=True, G2=True, opt=None):
    o=dict(S=10, stamps=False, rot="rbfb", hpub=1, prio=True, polllim=400000, codepf=True, wdpf=True)
    o.update(opt or {})
    a=G(name,256,512,lds=LDS_SZ,vgpr=256)
    L=a.lab
    def stamp(i):
        if o["stamps"]:
            a(f"s_memtime s[{sP1}:{sP1+1}]\ns_waitcnt lgkmcnt(0)\ns_mov_b32 s{sSTMP+i}, s{sP1}")
    def tagcheck(t0,t1,acc=False):
        if not acc:
            a(f"v_cmp_ne_u32 vcc, s{sT0}, v{t0}")
        else:
            a(f"v_cmp_ne_u32 s[{sP0}:{sP0+1}], s{sT0}, v{t0}\ns_or_b64 vcc, vcc, s[{sP0}:{sP0+1}]")
        a(f"v_cmp_ne_u32 s[{sP0}:{sP0+1}], s{sT1}, v{t1}\ns_or_b64 vcc, vcc, s[{sP0}:{sP0+1}]")
    def poll(loads, tags, first_done=False):
        lp=a.uniq("pl"); ck=a.uniq("pc"); dn=a.uniq("pd")
        a(f"s_mov_b32 s{sCNT}, {o['polllim']}")
        if first_done: a(f"s_branch {ck}")
        a(f"{lp}:")
        for l in loads: a(l)
        a("s_waitcnt vmcnt(0)")
        a(f"{ck}:")
        for i,(t0,t1) in enumerate(tags): tagcheck(t0,t1,acc=i>0)
        a(f"s_cbranch_scc0 {dn}")
        a(f"s_sub_u32 s{sCNT}, s{sCNT}, 1\ns_cbranch_scc0 {lp}")
        a(f"{dn}:")
        if not first_done: a.vm=[]
    def flagstore(soffreg, vt):
        a(f"v_mov_b32 v{vt}, s{sT0}\nv_mov_b32 v{vt+1}, s{sT1}\ns_mov_b64 exec, 1")
        a.iss("flag",f"buffer_store_dwordx2 {vr(vt,2)}, off, {srd(sWS)}, s{soffreg} sc1")
        a("s_mov_b64 exec, -1")

    a(f"s_cmp_ge_u32 s2, 256\ns_cbranch_scc1 {L('end')}")
    if o["stamps"]:
        a(f"s_memrealtime s[{sSTMP+24}:{sSTMP+25}]")
        a(f"s_memtime s[{sP1}:{sP1+1}]")
    for n,s_ in (("ws",sWS),("k",sK),("v",sV),("q",sQ),("wg",sWG),("wu",sWU),("shk",sSHK),("ssmk",sSSM),("wd",sWD),("out",sOUT)):
        a(f"s_load_dwordx2 s[{s_}:{s_+1}], s[0:1], {KA[n]}")
    a(f"s_load_dwordx2 s[{sDP}:{sDP+1}], s[0:1], {KA['ssmD']}")
    a(f"v_lshrrev_b32 v1, 6, v0\nv_and_b32 v0, 63, v0\nv_readfirstlane_b32 s{sWAVE}, v1")
    a(f"s_and_b32 s{sX}, s2, 7\ns_lshr_b32 s{sJ}, s2, 3\ns_lshr_b32 s{sR}, s{sX}, 1\ns_and_b32 s{sC}, s{sX}, 1")
    for n,s_ in (("ws",sWS),("k",sK),("v",sV),("q",sQ),("wg",sWG),("wu",sWU),("shk",sSHK),("ssmk",sSSM),("wd",sWD),("out",sOUT)):
        a(f"s_mov_b32 s{s_+2}, {WS_SZ if n=='ws' else SZ[n]}\ns_mov_b32 s{s_+3}, 0x20000")
    a(f"s_and_b32 s{sW}, s{sWAVE}, 3")
    if o["codepf"]:
        a(f"s_getpc_b64 s[{sP0}:{sP0+1}]\n{L('pc')}:\ns_lshl_b32 s{sA}, s{sJ}, 3\ns_add_u32 s{sA}, s{sA}, s{sWAVE}\ns_lshl_b32 s{sA}, s{sA}, 7")
        a(f"s_min_u32 s{sA}, s{sA}, {L('end')}-{L('pc')}-4\nv_mov_b32 v2, s{sA}")
        a.iss("pf",f"global_load_dword v254, v2, s[{sP0}:{sP0+1}]")
    a(f"""s_and_b32 s{sA}, s{sJ}, 3
    s_lshl_b32 s{sRB}, s{sR}, 2
    s_add_u32 s{sRB}, s{sRB}, s{sA}
    s_lshr_b32 s{sB_}, s{sJ}, 2
    s_mul_i32 s{sCc}, s{sC}, 7
    s_add_u32 s{sFB}, s{sCc}, s{sB_}
    s_mov_b32 s{sROLE}, 0
    s_cmp_lt_u32 s{sB_}, 7
    s_cbranch_scc1 {L('roled')}
    s_mov_b32 s{sFB}, 14
    s_lshr_b32 s{sA}, s{sA}, 1
    s_cmp_eq_u32 s{sA}, s{sC}
    s_cbranch_scc1 {L('roled')}
    s_mov_b32 s{sROLE}, 1
    s_and_b32 s{sA}, s{sJ}, 1
    s_lshl_b32 s{sB_}, s{sR}, 1
    s_add_u32 s{sA}, s{sA}, s{sB_}
    s_add_u32 s{sFB}, s{sCc}, s{sA}
    s_cmp_lt_u32 s{sA}, 7
    s_cbranch_scc1 {L('roled')}
    s_mov_b32 s{sFB}, 14
    s_cmp_eq_u32 s{sC}, 0
    s_cbranch_scc1 {L('roled')}
    s_mov_b32 s{sROLE}, 2
    {L('roled')}:
    s_and_b32 s{sA}, s{sJ}, 7
    s_lshl_b32 s{sTB}, s{sR}, 3
    s_add_u32 s{sTB}, s{sTB}, s{sA}
    s_lshr_b32 s{sA}, s{sJ}, 3
    s_lshl_b32 s{sDB}, s{sC}, 2
    s_add_u32 s{sDB}, s{sDB}, s{sA}""")
    if o["rot"]=="rbfb":   a(f"s_lshl_b32 s{sC0}, s{sRB}, 1\ns_add_u32 s{sC0}, s{sC0}, s{sFB}\ns_add_u32 s{sC0}, s{sC0}, s{sR}\ns_and_b32 s{sC0}, s{sC0}, 7")
    elif o["rot"]=="none": a(f"s_mov_b32 s{sC0}, 0")
    elif o["rot"]=="xcd":  a(f"s_lshl_b32 s{sC0}, s{sR}, 1\ns_lshl_b32 s{sA}, s{sC}, 2\ns_add_u32 s{sC0}, s{sC0}, s{sA}\ns_and_b32 s{sC0}, s{sC0}, 7")
    elif o["rot"]=="two":  a(f"s_add_u32 s{sC0}, s{sRB}, s{sFB}\ns_and_b32 s{sC0}, s{sC0}, 1\ns_lshl_b32 s{sC0}, s{sC0}, 2\ns_add_u32 s{sC0}, s{sC0}, s{sR}\ns_and_b32 s{sC0}, s{sC0}, 7")
    elif o["rot"]=="four": a(f"s_add_u32 s{sC0}, s{sRB}, s{sFB}\ns_and_b32 s{sC0}, s{sC0}, 3\ns_lshl_b32 s{sC0}, s{sC0}, 1\ns_add_u32 s{sC0}, s{sC0}, s{sR}\ns_and_b32 s{sC0}, s{sC0}, 7")
    a("s_waitcnt lgkmcnt(0)")
    if o["stamps"]: a(f"s_mov_b32 s{sSTMP}, s{sP1}")
    a(f"s_load_dword s{sT0}, s[{sWS}:{sWS+1}], {E_OFF}")
    a(f"s_lshl_b32 s{sA}, s{sX}, 5\ns_add_u32 s{sA}, s{sA}, s{sJ}\ns_lshl_b32 s{sA}, s{sA}, 2")
    a(f"s_load_dword s{sD}, s[{sDP}:{sDP+1}], s{sA}")
    a(f"s_cmp_ge_u32 s{sWAVE}, 4\ns_cbranch_scc1 {L('Lw')}")
    vm0=list(a.vm)
    def tagready():
        a(f"s_waitcnt lgkmcnt(0)\ns_add_u32 s{sT0}, s{sT0}, 1\ns_mul_i32 s{sT1}, s{sT0}, 0x9E3779B1\ns_add_u32 s{sT1}, s{sT1}, 0x7F4A7C15")

    def w_voffs(vg,vu,srow,t):
        a(f"s_mul_i32 s{sA}, s{sFB}, 192")
        if srow is not None: a(f"s_mul_i32 s{sB_}, s{srow}, {16*2752}\ns_add_u32 s{sA}, s{sA}, s{sB_}")
        a(f"s_movk_i32 s{sB_}, 2752")
        a(f"v_lshrrev_b32 v{t}, 4, v0\nv_bfe_u32 v{t+1}, v0, 2, 2\nv_and_b32 v{t+2}, 3, v0\nv_lshlrev_b32 v{t+2}, 4, v{t+2}")
        a(f"s_cmp_eq_u32 s{sFB}, 14\ns_cselect_b32 s{sCc}, {OOB//2}, 64")
        for n in range(3):
            a(f"""v_add_u32 v{t+3}, {4*n}, v{t}
            v_mul_u32_u24 v{t+4}, 11, v{t+3}
            v_lshrrev_b32 v{t+4}, 5, v{t+4}
            v_mul_u32_u24 v{t+5}, 3, v{t+4}
            v_sub_u32 v{t+3}, v{t+3}, v{t+5}
            v_lshl_add_u32 v{t+4}, v{t+4}, 2, v{t+1}
            v_mad_u32_u24 v{t+4}, v{t+4}, s{sB_}, v{t+2}
            v_mul_lo_u32 v{t+3}, v{t+3}, s{sCc}
            v_add3_u32 v{vg+n}, v{t+4}, v{t+3}, s{sA}
            v_xor_b32 v{vu+n}, 32, v{vg+n}""")
    def a_lanepart(dst,matstride,t):
        a(f"""v_bfe_u32 v{t}, v0, 4, 1
        v_mul_u32_u24 v{dst}, {matstride+32}, v{t}
        v_lshrrev_b32 v{t}, 5, v0
        v_mul_u32_u24 v{t}, 1536, v{t}
        v_bfe_u32 v{t+1}, v0, 2, 2
        v_lshl_add_u32 v{t}, v{t+1}, 6, v{t}
        v_and_b32 v{t+1}, 3, v0
        v_lshl_add_u32 v{t}, v{t+1}, 3, v{t}
        v_add_u32 v{dst}, v{dst}, v{t}""")

    def colsum():
        w_voffs(1,4,None,16)
        a_lanepart(7,3072,16)
        a(f"s_mul_i32 s{sDd}, s{sWAVE}, 12288\nv_add_u32 v7, s{sDd}, v7\nv_xor_b32 v8, 32, v7")
        a(f"s_mul_i32 s{sE_}, s{sWAVE}, {64*2752}")
        for i in range(4): a(f"v_mov_b32 v{12+i}, 0x3f803f80")
        def issue(s):
            for mat in range(2):
                for n in range(3):
                    a.dma(f"cs{s}",(1 if mat==0 else 4)+n, sWG if mat==0 else sWU, f"s{sE_}", f"s_add_u32 m0, s{sDd}, {(s&1)*6144+mat*3072+n*1024}")
            a(f"s_add_u32 s{sE_}, s{sE_}, {16*2752}")
        issue(0); issue(1)
        for s in range(4):
            a.wait(f"cs{s}")
            for t in range(6):
                for r in range(2):
                    a(f"ds_read_b64_tr_b16 {vr(112+4*t+2*r,2)}, v{7+(t&1)} offset:{(s&1)*6144+r*768+(t>>1)*256}")
            a("s_waitcnt lgkmcnt(0)")
            if s<2: issue(s+2)
            for t in range(6):
                a(f"v_mfma_f32_32x32x16_bf16 {vr(16+16*t,16)}, v[12:15], {vr(112+4*t,4)}, {vr(16+16*t,16) if s else 0}")
        a(f"v_and_b32 v9, 31, v0\nv_lshlrev_b32 v9, 2, v9\ns_mul_i32 s{sA}, s{sWAVE}, 768\ns_add_u32 s{sA}, s{sA}, 114688\nv_add_u32 v9, s{sA}, v9")
        for t in range(6): a(f"ds_write_b32 v9, v{16+16*t} offset:{128*t}")
        a("s_waitcnt lgkmcnt(0)")

    if o["prio"]: a("s_setprio 1")
    if P:
        a(f"""s_lshl_b32 s{sA}, s{sJ}, 16
        s_lshl_b32 s{sB_}, s{sX}, 7
        s_add_u32 s{sA}, s{sA}, s{sB_}
        s_lshl_b32 s{sB_}, s{sW}, 5
        s_add_u32 s{sA}, s{sA}, s{sB_}
        v_bfe_u32 v2, v0, 1, 3
        v_lshrrev_b32 v3, 4, v0
        v_lshl_add_u32 v3, v2, 3, v3
        v_lshrrev_b32 v2, 2, v2
        v_xor_b32 v2, v2, v0
        v_and_b32 v2, 1, v2
        v_lshlrev_b32 v2, 4, v2
        v_lshl_add_u32 v2, v3, 10, v2
        v_add_u32 v2, s{sA}, v2
        v_subrev_u32 v3, 4096, v2
        s_mul_i32 s{sDd}, s{sW}, 5120
        s_add_u32 s{sDd}, s{sDd}, {HC}
        s_movk_i32 s{sE_}, 4096""")
        a.dma("st",3,sK,"0",f"s_mov_b32 m0, s{sDd}")
        a.dma("st",2,sK,"0",f"s_add_u32 m0, s{sDd}, 1024")
        a.dma("st",2,sK,f"s{sE_}",f"s_add_u32 m0, s{sDd}, 2048")
        a.dma("st",2,sV,"0",f"s_add_u32 m0, s{sDd}, 3072")
        a.dma("st",2,sV,f"s{sE_}",f"s_add_u32 m0, s{sDd}, 4096")
        a(f"""s_lshl_b32 s{sA}, s{sX}, 6
        s_lshl_b32 s{sB_}, s{sW}, 4
        s_add_u32 s{sA}, s{sA}, s{sB_}
        v_lshrrev_b32 v4, 3, v0
        v_lshl_add_u32 v5, v4, 1, s{sA}
        v_lshlrev_b32 v6, 3, v5""")
        a.iss("st",f"buffer_load_dwordx4 v[16:19], v6, {srd(sSHK)}, 0 offen")
    if o["wdpf"] and G2:
        a(f"""s_lshl_b32 s{sA}, s{sJ}, 2
        s_add_u32 s{sA}, s{sA}, s{sW}
        s_mul_i32 s{sA}, s{sA}, 11
        v_min_u32 v7, 10, v0
        v_add_u32 v7, s{sA}, v7
        v_min_u32 v7, 1375, v7
        v_and_b32 v8, 3, v7
        v_lshrrev_b32 v7, 2, v7
        v_lshlrev_b32 v8, 7, v8
        v_lshl_add_u32 v7, v7, 10, v8
        s_mul_i32 s{sA}, s{sR}, {344*1024}
        s_lshl_b32 s{sB_}, s{sC}, 9
        s_add_u32 s{sA}, s{sA}, s{sB_}""")
        a.iss("pf",f"buffer_load_dword v253, v7, {srd(sWD)}, s{sA} offen")
    if P:
        a(f"""v_and_b32 v7, 7, v0
        v_lshrrev_b32 v8, 2, v7
        v_lshrrev_b32 v9, 5, v0
        v_xor_b32 v8, v8, v9
        v_lshlrev_b32 v8, 4, v8
        v_lshl_add_u32 v8, v7, 5, v8
        v_and_b32 v9, 3, v4
        v_lshl_add_u32 v8, v9, 2, v8
        v_add_u32 v8, s{sDd}, v8
        v_lshlrev_b32 v5, 12, v5
        v_lshl_add_u32 v5, v7, 4, v5
        s_lshl_b32 s{sA}, s{sJ}, 7
        s_add_u32 s{sF}, s{sA}, {KVT}
        s_add_u32 s{sE_}, s{sF}, 4096""")
    tagready()
    if P:
        a.wait("st")
        stamp(1)
        for i in range(19): a(f"ds_read_b32 v{20+i}, v8 offset:{(i+1)*256}")
        for c in range(2):
            for h in range(2):
                a(f"v_lshlrev_b32 v{40+4*c+2*h}, 16, v{16+2*c+h}\nv_and_b32 v{41+4*c+2*h}, 0xffff0000, v{16+2*c+h}")
        a("s_waitcnt lgkmcnt(0)")
        for c in range(2):
            kf=48; vf=60; ot=68
            for i in range(11): a(f"v_lshlrev_b32 v{kf+i}, 16, v{20+i}" if c==0 else f"v_and_b32 v{kf+i}, 0xffff0000, v{20+i}")
            for i in range(8): a(f"v_lshlrev_b32 v{vf+i}, 16, v{31+i}" if c==0 else f"v_and_b32 v{vf+i}, 0xffff0000, v{31+i}")
            for t in range(8): a(f"v_mul_f32 v{ot+t}, v{kf+t}, v{43+4*c}")
            for jj in (2,1,0):
                for t in range(8): a(f"v_fmac_f32 v{ot+t}, v{kf+t+3-jj}, v{40+4*c+jj}")
            for t in range(8): a(f"v_mul_f32 v{ot+t}, v{ot+t}, v{vf+t}")
            for i in range(4): a(f"v_cvt_pk_bf16_f32 v{76+4*c+i}, v{ot+7-2*i}, v{ot+6-2*i}")
            a.iss("kvst",f"buffer_store_dwordx4 {vr(76+4*c,4)}, v5, {srd(sWS)}, s{sF if c==0 else sE_} offen sc1")
        stamp(2)
    def kvflag():
        a(f"""s_lshl_b32 s{sA}, s{sX}, 2
        s_add_u32 s{sA}, s{sA}, s{sW}
        s_lshl_b32 s{sA}, s{sA}, 5
        s_add_u32 s{sA}, s{sA}, s{sJ}
        s_lshl_b32 s{sA}, s{sA}, 3
        s_add_u32 s{sA}, s{sA}, {FKV}""")
        a.wait0(); flagstore(sA,250)
    a(f"s_cmp_lg_u32 s{sROLE}, 0\ns_cbranch_scc1 {L('Cspare')}")
    vmC=list(a.vm)
    F=[112,132]; GR=152
    CA=[172,16]; CB=[204,48]; CACC=112; AD=144
    def conv_addr():
        a(f"""s_lshr_b32 s{sA}, s{sW}, 1
        s_and_b32 s{sB_}, s{sW}, 1
        s_mul_i32 s{sCc}, s{sA}, {HCCH}
        s_lshl_b32 s{sDd}, s{sB_}, 8
        s_add_u32 s{sCc}, s{sCc}, s{sDd}
        s_add_u32 s{sCc}, s{sCc}, {HC+32+18}
        s_mul_i32 s{sE_}, s{sA}, {USZ}
        s_sub_u32 s{sE_}, s{sE_}, s{sDd}
        s_add_u32 s{sE_}, s{sE_}, {UB+512-32-192}
        v_and_b32 v12, 15, v0
        v_lshrrev_b32 v13, 4, v0
        v_add_u32 v14, 1, v12
        v_and_b32 v14, 3, v14
        v_mul_u32_u24 v14, {HCOPY-2}, v14
        v_lshl_add_u32 v14, v12, 1, v14
        v_lshlrev_b32 v13, 4, v13
        v_sub_u32 v14, v14, v13
        v_add_u32 v10, s{sCc}, v14
        v_lshl_add_u32 v11, v12, 5, v13
        v_add_u32 v11, s{sE_}, v11""")
    def conv_reads(rr):
        st=rr&1; r=[]
        for i in range(8):
            r.append(f"ds_read_b128 {vr(CB[st]+4*i,4)}, v11 offset:{512*i+64*(3-rr)}")
            r.append(f"ds_read_b64 {vr(CA[st]+4*i,2)}, v10 offset:{512*i+64*rr}")
            r.append(f"ds_read_b64 {vr(CA[st]+4*i+2,2)}, v10 offset:{512*i+64*rr+8}")
        return r
    if G1:
        a(f"""s_and_b32 s{sA}, s{sW}, 1
        s_lshr_b32 s{sB_}, s{sW}, 1
        v_and_b32 v12, 31, v0
        v_bfe_u32 v13, v0, 1, 3
        v_lshrrev_b32 v14, 5, v0
        v_xor_b32 v13, v13, v14
        v_lshlrev_b32 v13, 4, v13
        v_lshl_add_u32 v13, v12, 7, v13
        s_lshl_b32 s{sCc}, s{sA}, 13
        v_add_u32 v1, s{sCc}, v13
        v_xor_b32 v2, 32, v1
        v_xor_b32 v3, 64, v1
        v_xor_b32 v4, 96, v1""")
        a_lanepart(5,12288,13)
        a(f"""s_lshl_b32 s{sCc}, s{sB_}, 5
        v_xor_b32 v5, s{sCc}, v5
        v_xor_b32 v6, 32, v5
        s_lshl_b32 s{sCc}, s{sB_}, 8
        s_add_u32 s{sCc}, s{sCc}, 16384
        v_add_u32 v5, s{sCc}, v5
        s_lshl_b32 s{sDd}, s{sB_}, 9
        s_add_u32 s{sDd}, s{sDd}, 16384
        v_add_u32 v6, s{sDd}, v6""")
        a(f"""s_lshl_b32 s{sCc}, s{sRB}, 1
        s_add_u32 s{sCc}, s{sCc}, s{sA}
        s_lshl_b32 s{sDd}, s{sCc}, 10
        s_add_u32 s{sDd}, s{sDd}, {STATS}
        v_lshlrev_b32 v12, 4, v12
        v_add_u32 v7, s{sDd}, v12
        s_lshl_b32 s{sDd}, s{sFB}, 1
        s_add_u32 s{sDd}, s{sDd}, s{sB_}
        s_mul_i32 s{sE_}, s{sDd}, 1536
        s_add_u32 s{sE_}, s{sE_}, {CSUM}
        v_add_u32 v8, s{sE_}, v12
        s_mul_i32 s{sE_}, s{sCc}, {2*86*1024}
        s_mul_i32 s{sF}, s{sDd}, 3072
        s_add_u32 s{sE_}, s{sE_}, s{sF}
        s_add_u32 s{sE_}, s{sE_}, {HB}
        v_lshlrev_b32 v9, 4, v0
        v_add_u32 v9, s{sE_}, v9
        s_lshl_b32 s72, s{sCc}, 8
        s_lshl_b32 s{sF}, s{sDd}, 3
        s_add_u32 s72, s72, s{sF}
        s_add_u32 s72, s72, {FH}
        s_mul_i32 s73, s{sDd}, 3""")
        conv_addr()
        for i in range(96): a(f"v_mov_b32 v{16+i}, 0")
        def reads(f,s):
            b=F[f]
            return [f"ds_read_b128 {vr(b,4)}, v{1+s}",
                    f"ds_read_b64_tr_b16 {vr(b+8,2)}, v5 offset:{s*3072}",
                    f"ds_read_b64_tr_b16 {vr(b+10,2)}, v5 offset:{s*3072+768}",
                    f"ds_read_b128 {vr(b+4,4)}, v{1+s} offset:4096",
                    f"ds_read_b64_tr_b16 {vr(b+12,2)}, v6 offset:{s*3072}",
                    f"ds_read_b64_tr_b16 {vr(b+14,2)}, v6 offset:{s*3072+768}",
                    f"ds_read_b64_tr_b16 {vr(b+16,2)}, v5 offset:{s*3072+256}",
                    f"ds_read_b64_tr_b16 {vr(b+18,2)}, v5 offset:{s*3072+768+256}"]
        def mf(t,i,A,B): acc=16+32*t+16*i; return f"v_mfma_f32_32x32x16_bf16 {vr(acc,16)}, {vr(A,4)}, {vr(B,4)}, {vr(acc,16)}"
        def kstep(f,fill,per=2):
            b=F[f]; fill=list(fill)
            for t in range(3):
                for i in range(2):
                    a(mf(t,i,b+8+4*t,b+4*i))
                    for _ in range(per):
                        if fill: a(fill.pop(0))
            for x in fill: a(x)
        grl=[f"buffer_load_dwordx4 {vr(GR+4*t,4)}, v8, {srd(sWS)}, 0 offen offset:{512*t} sc1" for t in range(3)] + \
            [f"buffer_load_dwordx4 {vr(GR+12+4*i,4)}, v7, {srd(sWS)}, 0 offen offset:{512*i} sc1" for i in range(2)]
        a(f"s_mov_b32 s74, 0\ns_mov_b32 s75, 0\ns_mov_b32 s3, {SLOT}")
        stamp(3)
        a("s_barrier")
        stamp(4)
        for x in reads(0,0): a(x)
        a(f"{L('g1loop')}:")
        if P:
            a(f"s_cmp_lg_u32 s74, 1\ns_cbranch_scc1 {L('hk1')}")
            kvflag()
            a(f"{L('hk1')}:")
        a(f"s_cmp_lg_u32 s74, 6\ns_cbranch_scc1 {L('hk2')}")
        for x in grl: a(x)
        a(f"{L('hk2')}:")
        a(f"s_add_u32 s75, s75, 1\ns_cmp_eq_u32 s75, 3\ns_cselect_b32 s{sF}, {-2*SLOT}, s3\ns_cselect_b32 s75, 0, s75")
        a("s_waitcnt lgkmcnt(0)"); kstep(0,reads(1,1))
        a("s_waitcnt lgkmcnt(0)"); kstep(1,reads(0,2))
        a("s_waitcnt lgkmcnt(0)"); kstep(0,reads(1,3)+[f"v_add_u32 v{r}, s{sF}, v{r}" for r in range(1,7)],per=3)
        a(f"s_add_u32 s74, s74, 1\ns_cmp_eq_u32 s74, 8")
        a(f"s_waitcnt lgkmcnt(0)\ns_barrier\ns_cbranch_scc1 {L('g1done')}")
        kstep(1,reads(0,0))
        a(f"s_branch {L('g1loop')}")
        a(f"{L('g1done')}:")
        kstep(1,conv_reads(0),per=4)
        stamp(5)
        a.wait0()
        poll(grl,[(GR+4*t+2,GR+4*t+3) for t in range(5)],first_done=True)
        a("v_cmp_gt_u32 vcc, 32, v0")
        for t in range(3): a(f"v_mov_b32 v{GR+4*t+2}, 0\nv_mov_b32 v{GR+4*t+3}, 0")
        for i in range(2):
            g=GR+12+4*i
            a(f"""v_cndmask_b32 v{g+1}, 0, v{g}, vcc
            v_cvt_pk_bf16_f32 v{g}, -v{g+1}, -v{g+1}
            v_lshlrev_b32 v{g+2}, 16, v{g}
            v_add_f32 v{g+1}, v{g+1}, v{g+2}
            v_cvt_pk_bf16_f32 v{g+1}, -v{g+1}, -v{g+1}
            v_mov_b32 v{g+2}, 0
            v_mov_b32 v{g+3}, 0""")
        for t in range(3):
            a(f"s_add_u32 s{sA}, s73, {t}\ns_cmp_lt_u32 s{sA}, 86\ns_cselect_b32 s{sCc+t}, 0, {OOB}")
        a(f"v_add_u32 v12, {86*1024}, v9")
        def epi(t,i,buf):
            acc=16+32*t+16*i; r=[]
            for e in range(8): r.append(f"v_mul_f32 v{acc+e}, v{acc+e}, v{acc+8+e}")
            for e in range(4): r.append(f"v_cvt_pk_bf16_f32 v{buf+e}, v{acc+2*e}, v{acc+2*e+1}")
            r.append(f"buffer_store_dwordx4 {vr(buf,4)}, v{9 if i==0 else 12}, {srd(sWS)}, s{sCc+t} offen offset:{1024*t} sc1")
            return r
        order=[(t,i) for t in range(3) for i in range(2)]
        for t,i in order: a(mf(t,i,GR+4*t,GR+12+4*i))
        for n,(t,i) in enumerate(order):
            for x in epi(t,i,236+4*(n%3)): a(x)
            a.vm.append("hst")
        stamp(6)
        a(f"{L('conv')}:")
        a(f"""s_lshr_b32 s{sA}, s{sW}, 1
        s_lshl_b32 s{sA}, s{sA}, 4
        s_lshr_b32 s{sA}, s{sD}, s{sA}
        s_and_b32 s{sA}, s{sA}, 0xffff
        s_bitcmp1_b32 s{sW}, 0
        s_cselect_b32 s{sA}, 0, s{sA}
        v_and_b32 v12, 1, v0
        v_xor_b32 v12, 1, v12
        v_lshlrev_b32 v12, 4, v12
        v_lshlrev_b32 v12, v12, s{sA}
        v_bfe_u32 v13, v0, 3, 1
        v_add_u32 v13, 2, v13
        v_lshrrev_b32 v14, 4, v0
        v_cmp_eq_u32 vcc, v13, v14
        v_cndmask_b32 v12, 0, v12, vcc
        v_bfe_u32 v13, v0, 1, 2""")
        for d in range(4):
            a(f"v_cmp_eq_u32 vcc, {3-d}, v13\nv_cndmask_b32 v{AD+d}, 0, v12, vcc")
        def cm(tau,A,B,first=False):
            acc=CACC+4*tau
            return f"v_mfma_f32_16x16x32_bf16 {vr(acc,4)}, {vr(A,4)}, {vr(B,4)}, {0 if first else vr(acc,4)}"
        def hpub():
            lb=a.uniq("hp")
            a(f"s_cmp_lg_u32 s{sROLE}, 0\ns_cbranch_scc1 {lb}")
            a.wait0(); flagstore(72,250)
            a(f"{lb}:")
        if o["hpub"]==0: hpub()
        for rr in range(4):
            st=rr&1
            a("s_waitcnt lgkmcnt(0)")
            ms=[]
            if rr==0: ms+=[cm(t,AD,CB[0]+4*t,True) for t in range(8)]
            for i in range(8):
                for b in range(8-i): ms.append(cm(i+b,CA[st]+4*i,CB[st]+4*b))
            fill=conv_reads(rr+1) if rr<3 else []
            for m in ms:
                a(m)
                if fill: a(fill.pop(0))
            if o["hpub"]==rr+1: hpub()
        stamp(7)
        a(f"""s_lshr_b32 s{sA}, s{sW}, 1
        s_and_b32 s{sB_}, s{sW}, 1
        s_mul_i32 s{sCc}, s{sA}, {HCCH}
        s_add_u32 s{sCc}, s{sCc}, {HC+32+32}
        v_lshrrev_b32 v12, 3, v0
        v_and_b32 v13, 7, v0
        v_lshlrev_b32 v13, 4, v13
        v_lshl_add_u32 v12, v12, 9, v13
        v_add_u32 v12, s{sCc}, v12
        s_lshl_b32 s{sDd}, s{sW}, 2
        s_add_u32 s{sDd}, s{sDd}, {XFLAG}
        v_mov_b32 v13, s{sDd}
        v_xor_b32 v14, 4, v13
        v_mov_b32 v15, 1
        s_cmp_eq_u32 s{sB_}, 1
        s_cbranch_scc1 {L('xh1')}""")
        for half in range(2):
            if half==1: a(f"{L('xh1')}:")
            send=CACC+16*(1-half); keep=CACC+16*half
            for c in range(4): a(f"ds_write_b128 v12, {vr(send+4*c,4)} offset:{c*HCOPY+256*half}")
            a(f"s_waitcnt lgkmcnt(0)\nds_write_b32 v13, v15\ns_mov_b32 s{sCNT}, {o['polllim']*8}")
            lp=a.uniq("xl"); dn=a.uniq("xd")
            a(f"{lp}:\nds_read_b32 v16, v14\ns_waitcnt lgkmcnt(0)\nv_readfirstlane_b32 s{sE_}, v16\ns_cmp_eq_u32 s{sE_}, 1\ns_cbranch_scc1 {dn}\ns_sub_u32 s{sCNT}, s{sCNT}, 1\ns_cbranch_scc0 {lp}\n{dn}:")
            for c in range(4): a(f"ds_read_b128 {vr(16+4*c,4)}, v12 offset:{c*HCOPY+256*(1-half)}")
            a("s_waitcnt lgkmcnt(0)")
            for e in range(16): a(f"v_add_f32 v{16+e}, v{16+e}, v{keep+e}")
            if half==0: a(f"s_branch {L('xj')}")
        a(f"{L('xj')}:")
        for e in range(8): a(f"v_cvt_pk_bf16_f32 v{32+e}, v{16+2*e}, v{17+2*e}")
        a(f"""s_lshl_b32 s{sCc}, s{sX}, 5
        s_add_u32 s{sCc}, s{sCc}, s{sJ}
        s_lshl_b32 s{sCc}, s{sCc}, 1
        s_add_u32 s{sCc}, s{sCc}, s{sA}
        s_lshl_b32 s{sDd}, s{sCc}, 12
        s_lshl_b32 s{sE_}, s{sB_}, 11
        s_add_u32 s{sDd}, s{sDd}, s{sE_}
        s_add_u32 s{sDd}, s{sDd}, {YT}
        v_lshrrev_b32 v12, 5, v0
        v_lshlrev_b32 v12, 9, v12
        v_bfe_u32 v13, v0, 2, 2
        v_lshl_add_u32 v12, v13, 7, v12
        v_bfe_u32 v13, v0, 4, 1
        v_lshl_add_u32 v12, v13, 6, v12
        v_and_b32 v13, 3, v0
        v_lshl_add_u32 v12, v13, 4, v12""")
        for p in range(2):
            b=32+4*p
            a(f"v_permlane32_swap_b32 v{b}, v{b+2}\nv_permlane32_swap_b32 v{b+1}, v{b+3}")
            a.iss("yst",f"buffer_store_dwordx4 {vr(b,4)}, v12, {srd(sWS)}, s{sDd} offen offset:{1024*p} sc1")
        a(f"""s_lshl_b32 s{sE_}, s{sX}, 1
        s_add_u32 s{sE_}, s{sE_}, s{sB_}
        s_lshl_b32 s{sE_}, s{sE_}, 6
        s_and_b32 s{sCc}, s{sCc}, 63
        s_add_u32 s{sE_}, s{sE_}, s{sCc}
        s_lshl_b32 s{sE_}, s{sE_}, 3
        s_add_u32 s{sE_}, s{sE_}, {FY}""")
        a.wait0(); flagstore(sE_,250)
        stamp(8)
    elif P:
        kvflag()
    def fin_addr():
        a(f"""s_lshl_b32 s{sA}, s{sTB}, 3
        s_add_u32 s{sA}, s{sA}, s{sWAVE}
        s_lshl_b32 s{sA}, s{sA}, 3
        v_lshrrev_b32 v249, 3, v0
        v_add_u32 v249, s{sA}, v249
        v_and_b32 v248, 7, v0
        v_lshlrev_b32 v248, 4, v248
        v_lshl_add_u32 v248, v249, 10, v248
        s_lshl_b32 s{sA}, s{sDB}, 7
        v_add_u32 v248, s{sA}, v248
        v_lshlrev_b32 v249, 4, v249
        v_add_u32 v249, {STATS}, v249""")
    xload=f"buffer_load_dwordx4 v[240:243], v248, {srd(sQ)}, 0 offen"
    sload=f"buffer_load_dwordx4 v[244:247], v249, {srd(sWS)}, 0 offen sc1"
    if G2:
        a(f"{L('Cfin')}:")
        fin_addr()
        a(xload)
        a(f"""s_lshr_b32 s{sA}, s{sTB}, 4
        s_lshl_b32 s{sB_}, s{sDB}, 1
        s_add_u32 s{sA}, s{sA}, s{sB_}
        s_lshl_b32 s{sA}, s{sA}, 2
        s_add_u32 s{sA}, s{sA}, s{sW}
        s_lshl_b32 s{sA}, s{sA}, 7
        s_add_u32 s{sF}, s{sA}, {FY}
        v_and_b32 v12, 15, v0
        v_lshlrev_b32 v12, 3, v12
        s_lshl_b32 s{sA}, s{sDB}, 2
        s_add_u32 s{sA}, s{sA}, s{sW}
        s_lshl_b32 s{sA}, s{sA}, 16
        s_lshl_b32 s{sB_}, s{sTB}, 7
        s_add_u32 s{sA}, s{sA}, s{sB_}
        s_add_u32 s{sDd}, s{sA}, {YT}
        s_add_u32 s{sE_}, s{sDd}, 32768
        v_lshrrev_b32 v13, 3, v0
        v_and_b32 v14, 7, v0
        v_lshlrev_b32 v14, 4, v14
        v_lshl_add_u32 v13, v13, 12, v14
        s_lshr_b32 s{sA}, s{sW}, 1
        s_mul_i32 s{sA}, s{sA}, {USZ}
        s_and_b32 s{sB_}, s{sW}, 1
        s_mul_i32 s{sB_}, s{sB_}, 2176
        s_add_u32 s{sA}, s{sA}, s{sB_}
        s_add_u32 s{sCc}, s{sA}, {UB}
        v_lshlrev_b32 v14, 4, v0
        v_add_u32 v14, s{sCc}, v14
        v_bfe_u32 v15, v0, 2, 2
        v_lshlrev_b32 v15, 7, v15
        v_and_b32 v16, 1, v0
        v_lshl_add_u32 v15, v16, 6, v15
        v_lshrrev_b32 v16, 4, v0
        v_lshl_add_u32 v15, v16, 4, v15
        v_bfe_u32 v16, v0, 1, 1
        v_lshl_add_u32 v15, v16, 3, v15
        v_add_u32 v15, s{sCc}, v15
        v_lshlrev_b32 v16, 5, v0
        v_add_u32 v16, s{sCc}, v16""")
        poll([f"buffer_load_dwordx2 v[18:19], v12, {srd(sWS)}, s{sF} offen sc1", sload],[(18,19),(246,247)])
        stamp(9)
        a(f"buffer_load_dwordx4 v[20:23], v13, {srd(sWS)}, s{sDd} offen sc1\nbuffer_load_dwordx4 v[24:27], v13, {srd(sWS)}, s{sE_} offen sc1")
        a("s_waitcnt vmcnt(1)\nds_write_b128 v14, v[20:23]\ns_waitcnt vmcnt(0)\nds_write_b128 v14, v[24:27] offset:1024\ns_waitcnt lgkmcnt(0)")
        for i in range(4): a(f"ds_read_b64_tr_b16 {vr(28+2*i,2)}, v15 offset:{512*i}")
        a("s_waitcnt lgkmcnt(0)\nds_write_b128 v16, v[28:31]\nds_write_b128 v16, v[32:35] offset:16")
        a(f"s_branch {L('final')}")
    else:
        a(f"s_branch {L('fin0')}")

    a(f"{L('Cspare')}:")
    a.vm=list(vmC)
    if P:
        a(f"s_cmp_eq_u32 s{sROLE}, 2\ns_cbranch_scc1 {L('Cs2')}")
        colsum()
        a(f"{L('Cs2')}:")
        kvflag()
        a("s_barrier")
        a(f"s_cmp_eq_u32 s{sROLE}, 2\ns_cbranch_scc1 {L('Cbump')}")
        a(f"s_cmp_eq_u32 s{sW}, 3\ns_cbranch_scc1 {L('Cs3')}")
        a(f"s_lshl_b32 s{sA}, s{sW}, 6\nv_add_u32 v9, s{sA}, v0\nv_lshlrev_b32 v12, 2, v9\nv_add_u32 v12, 114688, v12")
        for W in range(8): a(f"ds_read_b32 v{16+W}, v12 offset:{768*W}")
        a(f"s_mul_i32 s{sA}, s{sFB}, 3072\ns_add_u32 s{sA}, s{sA}, {CSUM}\nv_lshlrev_b32 v9, 4, v9\ns_waitcnt lgkmcnt(0)")
        for W in range(1,8): a(f"v_add_f32 v16, v16, v{16+W}")
        a(f"""v_cvt_pk_bf16_f32 v17, v16, v16
        v_lshlrev_b32 v17, 16, v17
        v_sub_f32 v17, v16, v17
        v_cvt_pk_bf16_f32 v20, v16, v17
        v_cvt_pk_bf16_f32 v21, v16, v17
        v_mov_b32 v22, s{sT0}
        v_mov_b32 v23, s{sT1}
        buffer_store_dwordx4 v[20:23], v9, {srd(sWS)}, s{sA} offen sc1""")
        a(f"s_branch {L('Cs3')}")
        a(f"{L('Cbump')}:")
        if G2 and G1:
            a(f"s_cmp_lg_u32 s{sW}, 0\ns_cbranch_scc1 {L('Cs3')}")
            a(f"v_lshlrev_b32 v12, 3, v0\nv_lshlrev_b32 v13, 5, v0\ns_mov_b32 s{sDd}, {FKV}\ns_mov_b32 s{sE_}, {STATS}")
            a(f"{L('bl')}:")
            poll([f"buffer_load_dwordx2 v[18:19], v12, {srd(sWS)}, s{sDd} offen sc1", f"buffer_load_dwordx4 v[20:23], v13, {srd(sWS)}, s{sE_} offen sc1"],[(18,19),(22,23)])
            a(f"s_add_u32 s{sDd}, s{sDd}, 512\ns_add_u32 s{sE_}, s{sE_}, 2048\ns_cmp_lt_u32 s{sDd}, {FKV+8192}\ns_cbranch_scc1 {L('bl')}")
            a(f"v_mov_b32 v12, s{sT0}\ns_mov_b64 exec, 1\nbuffer_store_dword v12, off, {srd(sWS)}, 0 offset:{E_OFF} sc1\ns_mov_b64 exec, -1")
        a(f"{L('Cs3')}:")
    if G1:
        conv_addr()
        if not P: a("s_barrier")
        a("s_barrier\ns_barrier")
        for x in conv_reads(0): a(x)
        a(f"s_branch {L('conv')}")
    elif G2:
        a(f"s_branch {L('Cfin')}")
    else:
        a(f"s_branch {L('fin0')}")

    a(f"{L('Lw')}:")
    a.vm=list(vm0)
    SS=160
    if P:
        a(f"""s_lshl_b32 s{sA}, s{sX}, 5
        s_add_u32 s{sA}, s{sA}, s{sJ}
        s_lshl_b32 s{sA}, s{sA}, 2
        s_add_u32 s72, s{sA}, s{sW}
        s_lshl_b32 s{sA}, s72, 11
        v_lshlrev_b32 v9, 4, v0""")
        a.iss("xr",f"buffer_load_dwordx4 v[208:211], v9, {srd(sQ)}, s{sA} offen")
        a.iss("xr",f"buffer_load_dwordx4 v[212:215], v9, {srd(sQ)}, s{sA} offen offset:1024")
    def stats():
        a.wait("xr")
        for r in range(2):
            for i in range(4):
                a(f"v_lshlrev_b32 v{216+8*r+2*i}, 16, v{208+4*r+i}\nv_and_b32 v{217+8*r+2*i}, 0xffff0000, v{208+4*r+i}")
        def red(x0,x1):
            for d in ("row_shr:1 row_mask:0xf","row_shr:2 row_mask:0xf","row_shr:4 row_mask:0xf","row_shr:8 row_mask:0xf","row_bcast:15 row_mask:0xa","row_bcast:31 row_mask:0xc"):
                for x in (x0,x1): a(f"v_add_f32_dpp v{x}, v{x}, v{x} {d} bank_mask:0xf")
        for r in range(2): a(f"v_add_f32 v{232+4*r}, v{216+8*r}, v{217+8*r}")
        for i in range(2,8):
            for r in range(2): a(f"v_add_f32 v{232+4*r}, v{232+4*r}, v{216+8*r+i}")
        red(232,236)
        for r in range(2): a(f"v_mul_f32 v{232+4*r}, 0x3b000000, v{232+4*r}")
        for r in range(2): a(f"v_readlane_b32 s{sA+r}, v{232+4*r}, 63")
        for i in range(8):
            for r in range(2): a(f"v_subrev_f32 v{216+8*r+i}, s{sA+r}, v{216+8*r+i}")
        for r in range(2): a(f"v_mul_f32 v{233+4*r}, v{216+8*r}, v{216+8*r}")
        for i in range(1,8):
            for r in range(2): a(f"v_fmac_f32 v{233+4*r}, v{216+8*r+i}, v{216+8*r+i}")
        red(233,237)
        a(f"s_mov_b32 s{sCc}, 0x3b000000\nv_mov_b32 v216, 0x3727c5ac")
        for r in range(2): a(f"v_fma_f32 v{233+4*r}, v{233+4*r}, s{sCc}, v216")
        for r in range(2): a(f"v_rsq_f32 v{233+4*r}, v{233+4*r}\nv_mov_b32 v{234+4*r}, s{sT0}\nv_mov_b32 v{235+4*r}, s{sT1}")
        a(f"s_lshl_b32 s{sA}, s72, 5\ns_add_u32 s{sA}, s{sA}, {STATS}\ns_lshl_b64 exec, 1, 63")
        for r in range(2): a.iss("sst",f"buffer_store_dwordx4 {vr(232+4*r,4)}, off, {srd(sWS)}, s{sA} offset:{16*r} sc1")
        a("s_mov_b64 exec, -1")
    def ssm_loads():
        a(f"""s_lshl_b32 s{sA}, s{sX}, 5
        s_add_u32 s{sA}, s{sA}, s{sJ}
        s_lshl_b32 s{sA}, s{sA}, 2
        s_add_u32 s{sA}, s{sA}, s{sW}
        s_lshl_b32 s73, s{sA}, 11
        v_lshlrev_b32 v9, 4, v0""")
        for it in range(2):
            for sh in range(3):
                a.iss("ssm",f"buffer_load_dwordx4 {vr(SS+12*it+4*sh,4)}, v9, {srd(sSSM)}, s73 offen offset:{1024*it+4*sh}")
    kvpoll_load=f"buffer_load_dwordx2 v[200:201], v10, {srd(sWS)}, s74 offen sc1"
    def kvpoll_issue():
        a(f"""s_lshl_b32 s{sA}, s{sX}, 2
        s_lshr_b32 s{sB_}, s{sJ}, 3
        s_add_u32 s{sA}, s{sA}, s{sB_}
        s_lshl_b32 s{sA}, s{sA}, 8
        s_add_u32 s74, s{sA}, {FKV}
        v_and_b32 v10, 31, v0
        v_lshlrev_b32 v10, 3, v10""")
        a.iss("kvp",kvpoll_load)
    def u_loads():
        a.wait("kvp"); sv=list(a.vm)
        poll([kvpoll_load],[(200,201)],first_done=True); a.vm=sv
        a(f"s_add_u32 s{sA}, s73, {KVT}")
        for it in range(2): a.iss("u",f"buffer_load_dwordx4 {vr(192+4*it,4)}, v9, {srd(sWS)}, s{sA} offen offset:{1024*it} sc1")
    def hc_build():
        if "ssm" in a.vm: a.wait("ssm")
        a(f"""s_lshr_b32 s{sA}, s{sW}, 1
        s_and_b32 s{sB_}, s{sW}, 1
        s_mul_i32 s{sCc}, s{sA}, {HCCH}
        s_lshl_b32 s{sDd}, s{sB_}, 11
        s_add_u32 s{sCc}, s{sCc}, s{sDd}
        s_add_u32 s{sCc}, s{sCc}, {HC}
        v_add_u32 v11, s{sCc}, v9""")
        for it in range(2):
            A=SS+12*it; B=A+4; C_=A+8
            for d in range(4): a(f"v_alignbit_b32 v{184+d}, v{B+d}, v{A+d}, 16")
            for d in range(4): a(f"v_alignbit_b32 v{188+d}, v{C_+d}, v{B+d}, 16")
            for c,src in enumerate((A,184,B,188)):
                a(f"ds_write_b128 v11, {vr(src,4)} offset:{32+1024*it+c*HCOPY}")
            if it==0:
                lb=a.uniq("hz")
                a(f"s_cmp_eq_u32 s{sB_}, 1\ns_cbranch_scc1 {lb}")
                for d in range(4): a(f"v_mov_b32 v{204+d}, 0")
                a(f"v_lshlrev_b32 v202, 16, v{A}\ns_mov_b64 exec, 3")
                for c in range(4): a(f"ds_write_b128 v11, v[204:207] offset:{c*HCOPY}")
                a("s_mov_b64 exec, 1")
                a(f"ds_write_b32 v11, v202 offset:{HCOPY+28}\nds_write_b32 v11, v{A} offset:{2*HCOPY+28}\nds_write_b32 v11, v202 offset:{3*HCOPY+24}\nds_write_b32 v11, v184 offset:{3*HCOPY+28}")
                a(f"s_mov_b64 exec, -1\n{lb}:")
                a("s_waitcnt lgkmcnt(0)")
    def u_write():
        a(f"""s_lshr_b32 s{sA}, s{sW}, 1
        s_and_b32 s{sB_}, s{sW}, 1
        s_mul_i32 s{sCc}, s{sA}, {USZ}
        s_add_u32 s{sCc}, s{sCc}, {UB}
        s_lshl_b32 s{sDd}, s{sB_}, 11
        s_add_u32 s{sDd}, s{sDd}, s{sCc}
        v_add_u32 v11, s{sDd}, v9
        v_lshlrev_b32 v12, 2, v0
        s_lshl_b32 s{sB_}, s{sB_}, 8
        s_add_u32 s{sCc}, s{sCc}, s{sB_}
        v_add_u32 v12, s{sCc}, v12
        v_mov_b32 v13, 0
        ds_write_b32 v12, v13
        s_lshl_b32 s{sA}, s{sW}, 2
        s_add_u32 s{sA}, s{sA}, {XFLAG}
        v_mov_b32 v12, s{sA}
        ds_write_b32 v12, v13""")
        if "u" in a.vm: a.wait("u")
        for it in range(2): a(f"ds_write_b128 v11, {vr(192+4*it,4)} offset:{512+1024*it}")

    a(f"s_cmp_lg_u32 s{sROLE}, 0\ns_cbranch_scc1 {L('Lspare')}")
    vmL=list(a.vm)
    if G1:
        w_voffs(1,4,sW,16)
        a(f"""s_lshl_b32 s{sA}, s{sRB}, 2
        s_add_u32 s{sA}, s{sA}, s{sW}
        s_lshl_b32 s{sA}, s{sA}, 15
        v_lshrrev_b32 v16, 3, v0
        v_lshrrev_b32 v17, 4, v0
        v_xor_b32 v17, v17, v0
        v_and_b32 v17, 7, v17
        v_lshlrev_b32 v17, 4, v17
        v_lshl_add_u32 v7, v16, 10, v17
        v_add_u32 v7, s{sA}, v7
        v_xor_b32 v8, 64, v7
        v_add_u32 v8, 8192, v8
        s_lshl_b32 s75, s{sW}, 12
        s_mul_i32 s3, s{sW}, 3072
        s_add_u32 s3, s3, 16384""")
        def chunk_ops(j):
            sl=(j%3)*SLOT; ops=[]
            pre=f"s_add_u32 s{sA}, s{sC0}, {j}\ns_and_b32 s{sA}, s{sA}, 7\ns_mul_i32 s{sF}, s{sA}, {64*2752}\ns_lshl_b32 s0, s{sA}, 7\ns_add_u32 s1, s0, 16384"
            for n in range(4): ops.append((7+(n&1), sQ, "s0" if n<2 else "s1", f"s_add_u32 m0, s75, {sl+n*1024}"))
            for mat in range(2):
                for n in range(3): ops.append(((1 if mat==0 else 4)+n, sWG if mat==0 else sWU, f"s{sF}", f"s_add_u32 m0, s3, {sl+mat*12288+n*1024}"))
            return pre,ops
        def issue(j,lo,hi):
            if j>7 or lo>=hi: return
            pre,ops=chunk_ops(j)
            if lo==0: a(pre)
            for op in ops[lo:hi]: a.dma(f"c{j}",*op)
        S=o["S"]
        issue(0,0,10)
        ssm_loads()
        issue(1,0,S)
        tagready()
        if P: stats()
        stamp(1)
        a.wait("c0"); a("s_barrier")
        stamp(2)
        for j in range(6):
            issue(j+1,S,10);
            if j==3: kvpoll_issue()
            issue(j+2,0,S)
            if j==0: hc_build()
            if j==4: u_loads()
            a.wait(f"c{j+1}"); a("s_waitcnt lgkmcnt(0)\ns_barrier")
        issue(7,S,10)
        stamp(3)
    else:
        tagready()
        if P: stats()
    a(f"{L('Ljoin')}:")
    WR=80; AB=144; HR=160; NH=10
    def kslot(ks):
        if ks<12: return ("s75", (ks&3)*2048)
        if ks<17: return ("s3", (ks-12)*2048)
        return ("s3", SLOT+(ks-17)*2048)
    def wd_issue(k0,k1,tag):
        for ks in range(k0,k1):
            b,of=kslot(ks)
            for n in range(2):
                a(f"s_mov_b32 s{sA}, {(ks*16+8*n)*1024}")
                a.dma(tag,1,sWD,f"s{sA}",f"s_add_u32 m0, {b}, {of+n*1024}")
    def a_reads(ks,dst):
        b,of=kslot(ks); v=2 if b=="s75" else 3
        return [f"ds_read_b64_tr_b16 {vr(dst+4*u+2*r,2)}, v{v} offset:{of+r*1024+u*256}" for u in range(2) for r in range(2)]
    if G2:
        a(f"""s_mul_i32 s{sA}, s{sW}, {22*16*1024}
        s_lshl_b32 s{sB_}, s{sDB}, 7
        s_add_u32 s{sA}, s{sA}, s{sB_}
        v_bfe_u32 v16, v0, 2, 2
        v_lshrrev_b32 v17, 5, v0
        v_lshl_add_u32 v18, v17, 2, v16
        v_bfe_u32 v19, v0, 4, 1
        v_and_b32 v20, 3, v0
        v_lshlrev_b32 v1, 10, v18
        v_lshl_add_u32 v1, v19, 6, v1
        v_lshl_add_u32 v1, v20, 4, v1
        v_add_u32 v1, s{sA}, v1
        s_lshl_b32 s75, s{sW}, 13
        s_add_u32 s75, s75, {2*SLOT}
        s_mul_i32 s3, s{sW}, 10240
        v_lshlrev_b32 v2, 9, v17
        v_lshl_add_u32 v2, v16, 6, v2
        v_lshl_add_u32 v2, v19, 5, v2
        v_lshl_add_u32 v2, v20, 3, v2
        v_add_u32 v3, s3, v2
        v_add_u32 v2, s75, v2""")
        wd_issue(0,4,"w0")
    if G1:
        u_write()
        if "c7" in a.vm: a.wait("c7")
        a("s_waitcnt lgkmcnt(0)\ns_barrier")
    if G2:
        wd_issue(12,17,"w3")
        a.wait("w0")
        for ks in range(4):
            for x in a_reads(ks,WR+8*ks): a(x)
        a("s_waitcnt lgkmcnt(0)")
        wd_issue(4,8,"w1")
    if G1:
        a("s_barrier")
        stamp(4)
    if G2:
        wd_issue(17,22,"w4")
        a.wait("w1")
        for ks in range(4,8):
            for x in a_reads(ks,WR+8*ks): a(x)
        a("s_waitcnt lgkmcnt(0)")
        wd_issue(8,12,"w2")
        fin_addr()
        a.iss("x",xload)
        a(f"""s_mul_i32 s{sA}, s{sW}, 22
        s_mul_i32 s{sB_}, s{sA}, 43
        s_lshr_b32 s{sB_}, s{sB_}, 7
        v_and_b32 v6, 7, v0
        v_add_u32 v6, s{sB_}, v6
        v_min_u32 v6, 28, v6
        v_lshlrev_b32 v6, 3, v6
        s_lshl_b32 s{sF}, s{sTB}, 8
        s_add_u32 s{sF}, s{sF}, {FH}
        s_mul_i32 s{sB_}, s{sTB}, {2*86}
        s_add_u32 s{sA}, s{sA}, s{sB_}
        s_lshl_b32 s{sA}, s{sA}, 10
        s_add_u32 s{sA}, s{sA}, {HB}
        v_lshlrev_b32 v4, 4, v0
        v_add_u32 v4, s{sA}, v4
        v_add_u32 v5, {86*1024}, v4
        s_cmp_eq_u32 s{sW}, 3
        s_cselect_b32 s0, {OOB}, {5*4096}""")
        stamp(5)
        poll([f"buffer_load_dwordx2 v[8:9], v6, {srd(sWS)}, s{sF} offen sc1", sload],[(8,9),(246,247)])
        stamp(6)
        def h_issue(ks):
            if ks>21: return
            if ks%4==0 and ks<20: a(f"s_mov_b32 s1, {ks*1024}")
            so="s1" if ks<20 else "s0"
            for i in range(2):
                a.iss(f"h{ks}",f"buffer_load_dwordx4 {vr(HR+8*(ks%NH)+4*i,4)}, v{4+i}, {srd(sWS)}, {so} offen offset:{(ks&3)*1024} sc1")
        for ks in range(NH): h_issue(ks)
        for ks in range(22):
            A = WR+8*ks if ks<8 else AB+8*(ks&1)
            fill = a_reads(ks+1,AB+8*((ks+1)&1)) if 8<=ks+1<22 else []
            a.wait(f"h{ks}")
            if ks>=8: a("s_waitcnt lgkmcnt(0)")
            B=HR+8*(ks%NH)
            for u in range(2):
                for i in range(2):
                    acc=16+32*u+16*i
                    a(f"v_mfma_f32_32x32x16_bf16 {vr(acc,16)}, {vr(A+4*u,4)}, {vr(B+4*i,4)}, {vr(acc,16) if ks else 0}")
                    for _ in range(2):
                        if fill: a(fill.pop(0))
            h_issue(ks+NH)
        stamp(7)
        a(f"""v_and_b32 v4, 31, v0
        v_lshrrev_b32 v5, 5, v0
        v_xor_b32 v5, v5, v0
        v_and_b32 v5, 7, v5
        v_lshlrev_b32 v5, 4, v5
        v_lshl_add_u32 v4, v4, 8, v5
        v_xor_b32 v5, 32, v4
        v_xor_b32 v6, 64, v4
        v_xor_b32 v7, 96, v4""")
        for g in range(4): a(f"v_add_u32 v{4+g}, s3, v{4+g}")
        for u in range(2):
            for i in range(2):
                for g in range(4):
                    a(f"ds_write_b128 v{4+g}, {vr(16+32*u+16*i+4*g,4)} offset:{u*128+i*SLOT}")
        a(f"{L('final')}:")
        a(f"""s_lshr_b32 s{sA}, s{sWAVE}, 2
        s_mul_i32 s{sA}, s{sA}, {SLOT}
        s_lshl_b32 s{sB_}, s{sW}, 11
        s_add_u32 s{sA}, s{sA}, s{sB_}
        v_lshrrev_b32 v1, 3, v0
        v_and_b32 v2, 7, v0
        v_lshlrev_b32 v3, 1, v2
        v_xor_b32 v3, v3, v1
        v_lshlrev_b32 v3, 4, v3
        v_lshl_add_u32 v8, v1, 8, v3
        v_add_u32 v8, s{sA}, v8
        v_xor_b32 v9, 16, v8
        v_lshrrev_b32 v3, 2, v2
        v_mul_u32_u24 v10, {USZ}, v3
        v_bfe_u32 v3, v2, 1, 1
        v_mul_u32_u24 v3, 2176, v3
        v_add_u32 v10, v10, v3
        v_and_b32 v3, 1, v2
        v_lshl_add_u32 v10, v3, 4, v10
        v_lshl_add_u32 v10, v1, 5, v10
        s_lshl_b32 s{sA}, s{sWAVE}, 8
        s_add_u32 s{sA}, s{sA}, {UB}
        v_add_u32 v10, s{sA}, v10""")
        for i in range(4): a(f"v_lshlrev_b32 v{96+2*i}, 16, v{240+i}\nv_and_b32 v{97+2*i}, 0xffff0000, v{240+i}")
        a("v_mul_f32 v246, v245, v245\nv_mul_f32 v247, v246, v245\nv_mul_f32 v246, 0xbfb8aa3b, v246")
        for e in range(8): a(f"v_sub_f32 v{104+e}, v{96+e}, v244")
        for e in range(8): a(f"v_mul_f32 v{104+e}, v{104+e}, v247")
        a("s_waitcnt lgkmcnt(0)")
        stamp(10)
        a("s_barrier")
        stamp(11)
        for w in range(4):
            a(f"ds_read_b128 {vr(112+8*w,4)}, v8 offset:{10240*w}\nds_read_b128 {vr(116+8*w,4)}, v9 offset:{10240*w}")
        a("ds_read_b128 v[144:147], v10")
        a("s_waitcnt lgkmcnt(5)")
        for e in range(8): a(f"v_add_f32 v{112+e}, v{112+e}, v{120+e}")
        a("s_waitcnt lgkmcnt(1)")
        for e in range(8): a(f"v_add_f32 v{128+e}, v{128+e}, v{136+e}")
        for e in range(8): a(f"v_add_f32 v{112+e}, v{112+e}, v{128+e}")
        for e in range(8): a(f"v_mul_f32 v{120+e}, v{112+e}, v246")
        for e in range(8): a(f"v_exp_f32 v{120+e}, v{120+e}")
        a("s_waitcnt lgkmcnt(0)")
        for i in range(4): a(f"v_lshlrev_b32 v{128+2*i}, 16, v{144+i}\nv_and_b32 v{129+2*i}, 0xffff0000, v{144+i}")
        for e in range(8): a(f"v_add_f32 v{120+e}, 1.0, v{120+e}")
        for e in range(8): a(f"v_rcp_f32 v{120+e}, v{120+e}")
        for e in range(8): a(f"v_mul_f32 v{104+e}, v{104+e}, v{128+e}")
        for e in range(8): a(f"v_mul_f32 v{112+e}, v{112+e}, v{120+e}")
        for e in range(8): a(f"v_fmac_f32 v{96+e}, v{104+e}, v{112+e}")
        for i in range(4): a(f"v_cvt_pk_bf16_f32 v{148+i}, v{96+2*i}, v{97+2*i}")
        a(f"buffer_store_dwordx4 v[148:151], v248, {srd(sOUT)}, 0 offen")
    a(f"{L('fin0')}:")
    if o["stamps"]:
        a("s_waitcnt vmcnt(0)")
        stamp(12)
        a(f"s_lshl_b32 s{sA}, s2, 3\ns_add_u32 s{sA}, s{sA}, s{sWAVE}\ns_lshl_b32 s{sA}, s{sA}, 7\ns_add_u32 s{sA}, s{sA}, {STAMP}\ns_mov_b64 exec, 1")
        for i in range(26):
            a(f"v_mov_b32 v1, s{sSTMP+i}\nbuffer_store_dword v1, off, {srd(sWS)}, s{sA} offset:{4*i}")
    a("s_endpgm")
    a(f"{L('Lspare')}:")
    a.vm=list(vmL)
    if G1: ssm_loads()
    tagready()
    if P:
        stats()
        a(f"s_cmp_eq_u32 s{sROLE}, 2\ns_cbranch_scc1 {L('Ls2')}")
        colsum()
        a(f"v_lshlrev_b32 v9, 4, v0\n{L('Ls2')}:")
    if P or G1:
        a.wait0()
        a("s_barrier")
    if G1:
        kvpoll_issue()
        hc_build()
        u_loads()
        a.wait0()
    a(f"s_branch {L('Ljoin')}")
    a(f"{L('end')}:")
    a.L=hz.pad(a.L)
    return a

def bump_kernel():
    a=G("bump_kernel",1,64,vgpr=8)
    a("s_cmp_ge_u32 s2, 1\ns_cbranch_scc1 bump_end")
    a.srd(4,"ws",4096)
    a("s_waitcnt lgkmcnt(0)\nbuffer_load_dword v1, off, s[4:7], 0\ns_waitcnt vmcnt(0)\nv_add_u32 v1, 1, v1\nbuffer_store_dword v1, off, s[4:7], 0\nbump_end:")
    return a

if __name__=="__main__":
    import json
    mode=sys.argv[1]; out=sys.argv[2]; opt=json.loads(sys.argv[3]) if len(sys.argv)>3 else {}
    if mode=="split":
        emit([gen("a_kernel",True,False,False,opt),gen("b_kernel",False,True,False,opt),gen("c_kernel",False,False,True,opt),bump_kernel()],out)
    elif mode=="fused":
        emit([gen(NAME+"_kernel",True,True,True,opt)],out)
```

```python
import sys
from asmlib import *
import hz

E_OFF=0; FKV=0x1000; FH=0x4000; FY=0x8000; STATS=0x10000; CSUM=0x18000
KVT=0x100000; YT=0x300000; HB=0x500000; WS_SZ=0xB00000; STAMP=0xA80000
OOB=0x40000000
SLOT=40960; UB=121344; USZ=4608; HC=UB+2*USZ; HCCH=16640; HCOPY=4160
XFLAG=120832
LDS_SZ=163840
sQ,sK,sV,sSHK,sSSM,sWG,sWU,sWD,sOUT,sWS = 4,8,12,16,20,24,28,32,36,40
sWAVE,sX,sJ,sR,sC,sW,sT0,sT1 = 44,45,46,47,48,49,50,51
sDP=52; sD=54; sRB,sFB,sROLE,sC0,sTB,sDB = 55,56,57,58,59,60
sCNT=61; sP0=62; sP1=64
sA,sB_,sCc,sDd,sE_,sF = 66,67,68,69,70,71
sSTMP=76

def srd(n): return f"s[{n}:{n+3}]"
def vr(a,n): return f"v[{a}:{a+n-1}]"

class G(K):
    def __init__(s,*a,**k):
        super().__init__(*a,**k); s.vm=[]; s.nl=0; s.nst=0
    def lab(s,x): return f"{s.name}_{x}"
    def uniq(s,x): s.nl+=1; return f"{s.name}_{x}{s.nl}"
    def iss(s,tag,txt): s(txt); s.vm.append(tag)
    def wait(s,tag):
        idx=[i for i,t in enumerate(s.vm) if t==tag]
        assert idx, tag
        n=len(s.vm)-1-idx[-1]
        assert n<=63
        s(f"s_waitcnt vmcnt({n})"); s.vm=s.vm[idx[-1]+1:]
    def wait0(s): s("s_waitcnt vmcnt(0)"); s.vm=[]
    def dma(s,tag,voff,srdn,soff,m0expr):
        s(m0expr); s.iss(tag,f"buffer_load_dwordx4 v{voff}, {srd(srdn)}, {soff} offen lds")

def gen(name, P=True, G1=True, G2=True, opt=None):
    o=dict(S=10, stamps=False, rot="rbfb", hpub=1, prio=True, polllim=400000, codepf=True, wdpf=True, nodma=False, nomfma=False, noreads=False)
    o.update(opt or {})
    a=G(name,256,512,lds=LDS_SZ,vgpr=256)
    L=a.lab
    def stamp(i):
        if o["stamps"]:
            a(f"s_memtime s[{sP1}:{sP1+1}]\ns_waitcnt lgkmcnt(0)\ns_mov_b32 s{sSTMP+i}, s{sP1}")
    def tagcheck(t0,t1,acc=False):
        if not acc:
            a(f"v_cmp_ne_u32 vcc, s{sT0}, v{t0}")
        else:
            a(f"v_cmp_ne_u32 s[{sP0}:{sP0+1}], s{sT0}, v{t0}\ns_or_b64 vcc, vcc, s[{sP0}:{sP0+1}]")
        a(f"v_cmp_ne_u32 s[{sP0}:{sP0+1}], s{sT1}, v{t1}\ns_or_b64 vcc, vcc, s[{sP0}:{sP0+1}]")
    def poll(loads, tags, first_done=False):
        lp=a.uniq("pl"); ck=a.uniq("pc"); dn=a.uniq("pd")
        a(f"s_mov_b32 s{sCNT}, {o['polllim']}")
        if first_done: a(f"s_branch {ck}")
        a(f"{lp}:")
        for l in loads: a(l)
        a("s_waitcnt vmcnt(0)")
        a(f"{ck}:")
        for i,(t0,t1) in enumerate(tags): tagcheck(t0,t1,acc=i>0)
        a(f"s_cbranch_scc0 {dn}")
        a(f"s_sub_u32 s{sCNT}, s{sCNT}, 1\ns_cbranch_scc0 {lp}")
        a(f"{dn}:")
        if not first_done: a.vm=[]
    def flagstore(soffreg, vt):
        a(f"v_mov_b32 v{vt}, s{sT0}\nv_mov_b32 v{vt+1}, s{sT1}\ns_mov_b64 exec, 1")
        a.iss("flag",f"buffer_store_dwordx2 {vr(vt,2)}, off, {srd(sWS)}, s{soffreg} sc1")
        a("s_mov_b64 exec, -1")

    a(f"s_cmp_ge_u32 s2, 256\ns_cbranch_scc1 {L('end')}")
    if o["stamps"]:
        a(f"s_memrealtime s[{sSTMP+24}:{sSTMP+25}]")
        a(f"s_memtime s[{sP1}:{sP1+1}]")
    for n,s_ in (("ws",sWS),("k",sK),("v",sV),("q",sQ),("wg",sWG),("wu",sWU),("shk",sSHK),("ssmk",sSSM),("wd",sWD),("out",sOUT)):
        a(f"s_load_dwordx2 s[{s_}:{s_+1}], s[0:1], {KA[n]}")
    a(f"s_load_dwordx2 s[{sDP}:{sDP+1}], s[0:1], {KA['ssmD']}")
    a(f"v_lshrrev_b32 v1, 6, v0\nv_and_b32 v0, 63, v0\nv_readfirstlane_b32 s{sWAVE}, v1")
    a(f"s_and_b32 s{sX}, s2, 7\ns_lshr_b32 s{sJ}, s2, 3\ns_lshr_b32 s{sR}, s{sX}, 1\ns_and_b32 s{sC}, s{sX}, 1")
    for n,s_ in (("ws",sWS),("k",sK),("v",sV),("q",sQ),("wg",sWG),("wu",sWU),("shk",sSHK),("ssmk",sSSM),("wd",sWD),("out",sOUT)):
        a(f"s_mov_b32 s{s_+2}, {WS_SZ if n=='ws' else SZ[n]}\ns_mov_b32 s{s_+3}, 0x20000")
    a(f"s_and_b32 s{sW}, s{sWAVE}, 3")
    if o["codepf"]:
        a(f"s_getpc_b64 s[{sP0}:{sP0+1}]\n{L('pc')}:\ns_lshl_b32 s{sA}, s{sJ}, 3\ns_add_u32 s{sA}, s{sA}, s{sWAVE}\ns_lshl_b32 s{sA}, s{sA}, 7")
        a(f"s_min_u32 s{sA}, s{sA}, {L('end')}-{L('pc')}-4\nv_mov_b32 v2, s{sA}")
        a.iss("pf",f"global_load_dword v254, v2, s[{sP0}:{sP0+1}]")
    a(f"""s_and_b32 s{sA}, s{sJ}, 3
    s_lshl_b32 s{sRB}, s{sR}, 2
    s_add_u32 s{sRB}, s{sRB}, s{sA}
    s_lshr_b32 s{sB_}, s{sJ}, 2
    s_mul_i32 s{sCc}, s{sC}, 7
    s_add_u32 s{sFB}, s{sCc}, s{sB_}
    s_mov_b32 s{sROLE}, 0
    s_cmp_lt_u32 s{sB_}, 7
    s_cbranch_scc1 {L('roled')}
    s_mov_b32 s{sFB}, 14
    s_lshr_b32 s{sA}, s{sA}, 1
    s_cmp_eq_u32 s{sA}, s{sC}
    s_cbranch_scc1 {L('roled')}
    s_mov_b32 s{sROLE}, 1
    s_and_b32 s{sA}, s{sJ}, 1
    s_lshl_b32 s{sB_}, s{sR}, 1
    s_add_u32 s{sA}, s{sA}, s{sB_}
    s_add_u32 s{sFB}, s{sCc}, s{sA}
    s_cmp_lt_u32 s{sA}, 7
    s_cbranch_scc1 {L('roled')}
    s_mov_b32 s{sFB}, 14
    s_cmp_eq_u32 s{sC}, 0
    s_cbranch_scc1 {L('roled')}
    s_mov_b32 s{sROLE}, 2
    {L('roled')}:
    s_and_b32 s{sA}, s{sJ}, 7
    s_lshl_b32 s{sTB}, s{sR}, 3
    s_add_u32 s{sTB}, s{sTB}, s{sA}
    s_lshr_b32 s{sA}, s{sJ}, 3
    s_lshl_b32 s{sDB}, s{sC}, 2
    s_add_u32 s{sDB}, s{sDB}, s{sA}""")
    if o["rot"]=="rbfb":   a(f"s_lshl_b32 s{sC0}, s{sRB}, 1\ns_add_u32 s{sC0}, s{sC0}, s{sFB}\ns_add_u32 s{sC0}, s{sC0}, s{sR}\ns_and_b32 s{sC0}, s{sC0}, 7")
    elif o["rot"]=="none": a(f"s_mov_b32 s{sC0}, 0")
    elif o["rot"]=="xcd":  a(f"s_lshl_b32 s{sC0}, s{sR}, 1\ns_lshl_b32 s{sA}, s{sC}, 2\ns_add_u32 s{sC0}, s{sC0}, s{sA}\ns_and_b32 s{sC0}, s{sC0}, 7")
    elif o["rot"]=="two":  a(f"s_add_u32 s{sC0}, s{sRB}, s{sFB}\ns_and_b32 s{sC0}, s{sC0}, 1\ns_lshl_b32 s{sC0}, s{sC0}, 2\ns_add_u32 s{sC0}, s{sC0}, s{sR}\ns_and_b32 s{sC0}, s{sC0}, 7")
    elif o["rot"]=="four": a(f"s_add_u32 s{sC0}, s{sRB}, s{sFB}\ns_and_b32 s{sC0}, s{sC0}, 3\ns_lshl_b32 s{sC0}, s{sC0}, 1\ns_add_u32 s{sC0}, s{sC0}, s{sR}\ns_and_b32 s{sC0}, s{sC0}, 7")
    a("s_waitcnt lgkmcnt(0)")
    if o["stamps"]: a(f"s_mov_b32 s{sSTMP}, s{sP1}")
    a(f"s_load_dword s{sT0}, s[{sWS}:{sWS+1}], {E_OFF}")
    a(f"s_lshl_b32 s{sA}, s{sX}, 5\ns_add_u32 s{sA}, s{sA}, s{sJ}\ns_lshl_b32 s{sA}, s{sA}, 2")
    a(f"s_load_dword s{sD}, s[{sDP}:{sDP+1}], s{sA}")
    a(f"s_cmp_ge_u32 s{sWAVE}, 4\ns_cbranch_scc1 {L('Lw')}")
    vm0=list(a.vm)
    def tagready():
        a(f"s_waitcnt lgkmcnt(0)\ns_add_u32 s{sT0}, s{sT0}, 1\ns_mul_i32 s{sT1}, s{sT0}, 0x9E3779B1\ns_add_u32 s{sT1}, s{sT1}, 0x7F4A7C15")

    def w_voffs(vg,vu,srow,t):
        a(f"s_mul_i32 s{sA}, s{sFB}, 192")
        if srow is not None: a(f"s_mul_i32 s{sB_}, s{srow}, {16*2752}\ns_add_u32 s{sA}, s{sA}, s{sB_}")
        a(f"s_movk_i32 s{sB_}, 2752")
        a(f"v_lshrrev_b32 v{t}, 4, v0\nv_bfe_u32 v{t+1}, v0, 2, 2\nv_and_b32 v{t+2}, 3, v0\nv_lshlrev_b32 v{t+2}, 4, v{t+2}")
        a(f"s_cmp_eq_u32 s{sFB}, 14\ns_cselect_b32 s{sCc}, {OOB//2}, 64")
        for n in range(3):
            a(f"""v_add_u32 v{t+3}, {4*n}, v{t}
            v_mul_u32_u24 v{t+4}, 11, v{t+3}
            v_lshrrev_b32 v{t+4}, 5, v{t+4}
            v_mul_u32_u24 v{t+5}, 3, v{t+4}
            v_sub_u32 v{t+3}, v{t+3}, v{t+5}
            v_lshl_add_u32 v{t+4}, v{t+4}, 2, v{t+1}
            v_mad_u32_u24 v{t+4}, v{t+4}, s{sB_}, v{t+2}
            v_mul_lo_u32 v{t+3}, v{t+3}, s{sCc}
            v_add3_u32 v{vg+n}, v{t+4}, v{t+3}, s{sA}
            v_xor_b32 v{vu+n}, 32, v{vg+n}""")
    def a_lanepart(dst,matstride,t):
        a(f"""v_bfe_u32 v{t}, v0, 4, 1
        v_mul_u32_u24 v{dst}, {matstride+32}, v{t}
        v_lshrrev_b32 v{t}, 5, v0
        v_mul_u32_u24 v{t}, 1536, v{t}
        v_bfe_u32 v{t+1}, v0, 2, 2
        v_lshl_add_u32 v{t}, v{t+1}, 6, v{t}
        v_and_b32 v{t+1}, 3, v0
        v_lshl_add_u32 v{t}, v{t+1}, 3, v{t}
        v_add_u32 v{dst}, v{dst}, v{t}""")

    def colsum():
        w_voffs(1,4,None,16)
        a_lanepart(7,3072,16)
        a(f"s_mul_i32 s{sDd}, s{sWAVE}, 12288\nv_add_u32 v7, s{sDd}, v7\nv_xor_b32 v8, 32, v7")
        a(f"s_mul_i32 s{sE_}, s{sWAVE}, {64*2752}")
        for i in range(4): a(f"v_mov_b32 v{12+i}, 0x3f803f80")
        def issue(s):
            for mat in range(2):
                for n in range(3):
                    a.dma(f"cs{s}",(1 if mat==0 else 4)+n, sWG if mat==0 else sWU, f"s{sE_}", f"s_add_u32 m0, s{sDd}, {(s&1)*6144+mat*3072+n*1024}")
            a(f"s_add_u32 s{sE_}, s{sE_}, {16*2752}")
        issue(0); issue(1)
        for s in range(4):
            a.wait(f"cs{s}")
            for t in range(6):
                for r in range(2):
                    a(f"ds_read_b64_tr_b16 {vr(112+4*t+2*r,2)}, v{7+(t&1)} offset:{(s&1)*6144+r*768+(t>>1)*256}")
            a("s_waitcnt lgkmcnt(0)")
            if s<2: issue(s+2)
            for t in range(6):
                a(f"v_mfma_f32_32x32x16_bf16 {vr(16+16*t,16)}, v[12:15], {vr(112+4*t,4)}, {vr(16+16*t,16) if s else 0}")
        a(f"v_and_b32 v9, 31, v0\nv_lshlrev_b32 v9, 2, v9\ns_mul_i32 s{sA}, s{sWAVE}, 768\ns_add_u32 s{sA}, s{sA}, 114688\nv_add_u32 v9, s{sA}, v9")
        for t in range(6): a(f"ds_write_b32 v9, v{16+16*t} offset:{128*t}")
        a("s_waitcnt lgkmcnt(0)")

    if o["prio"]: a("s_setprio 1")
    if P:
        a(f"""s_lshl_b32 s{sA}, s{sJ}, 16
        s_lshl_b32 s{sB_}, s{sX}, 7
        s_add_u32 s{sA}, s{sA}, s{sB_}
        s_lshl_b32 s{sB_}, s{sW}, 5
        s_add_u32 s{sA}, s{sA}, s{sB_}
        v_bfe_u32 v2, v0, 1, 3
        v_lshrrev_b32 v3, 4, v0
        v_lshl_add_u32 v3, v2, 3, v3
        v_lshrrev_b32 v2, 2, v2
        v_xor_b32 v2, v2, v0
        v_and_b32 v2, 1, v2
        v_lshlrev_b32 v2, 4, v2
        v_lshl_add_u32 v2, v3, 10, v2
        v_add_u32 v2, s{sA}, v2
        v_subrev_u32 v3, 4096, v2
        s_mul_i32 s{sDd}, s{sW}, 5120
        s_add_u32 s{sDd}, s{sDd}, {HC}
        s_movk_i32 s{sE_}, 4096""")
        a.dma("st",3,sK,"0",f"s_mov_b32 m0, s{sDd}")
        a.dma("st",2,sK,"0",f"s_add_u32 m0, s{sDd}, 1024")
        a.dma("st",2,sK,f"s{sE_}",f"s_add_u32 m0, s{sDd}, 2048")
        a.dma("st",2,sV,"0",f"s_add_u32 m0, s{sDd}, 3072")
        a.dma("st",2,sV,f"s{sE_}",f"s_add_u32 m0, s{sDd}, 4096")
        a(f"""s_lshl_b32 s{sA}, s{sX}, 6
        s_lshl_b32 s{sB_}, s{sW}, 4
        s_add_u32 s{sA}, s{sA}, s{sB_}
        v_lshrrev_b32 v4, 3, v0
        v_lshl_add_u32 v5, v4, 1, s{sA}
        v_lshlrev_b32 v6, 3, v5""")
        a.iss("st",f"buffer_load_dwordx4 v[16:19], v6, {srd(sSHK)}, 0 offen")
    if o["wdpf"] and G2:
        a(f"""s_lshl_b32 s{sA}, s{sJ}, 2
        s_add_u32 s{sA}, s{sA}, s{sW}
        s_mul_i32 s{sA}, s{sA}, 11
        v_min_u32 v7, 10, v0
        v_add_u32 v7, s{sA}, v7
        v_min_u32 v7, 1375, v7
        v_and_b32 v8, 3, v7
        v_lshrrev_b32 v7, 2, v7
        v_lshlrev_b32 v8, 7, v8
        v_lshl_add_u32 v7, v7, 10, v8
        s_mul_i32 s{sA}, s{sR}, {344*1024}
        s_lshl_b32 s{sB_}, s{sC}, 9
        s_add_u32 s{sA}, s{sA}, s{sB_}""")
        a.iss("pf",f"buffer_load_dword v253, v7, {srd(sWD)}, s{sA} offen")
    if P:
        a(f"""v_and_b32 v7, 7, v0
        v_lshrrev_b32 v8, 2, v7
        v_lshrrev_b32 v9, 5, v0
        v_xor_b32 v8, v8, v9
        v_lshlrev_b32 v8, 4, v8
        v_lshl_add_u32 v8, v7, 5, v8
        v_and_b32 v9, 3, v4
        v_lshl_add_u32 v8, v9, 2, v8
        v_add_u32 v8, s{sDd}, v8
        v_lshlrev_b32 v5, 12, v5
        v_lshl_add_u32 v5, v7, 4, v5
        s_lshl_b32 s{sA}, s{sJ}, 7
        s_add_u32 s{sF}, s{sA}, {KVT}
        s_add_u32 s{sE_}, s{sF}, 4096""")
    tagready()
    if P:
        a.wait("st")
        stamp(1)
        for i in range(19): a(f"ds_read_b32 v{20+i}, v8 offset:{(i+1)*256}")
        for c in range(2):
            for h in range(2):
                a(f"v_lshlrev_b32 v{40+4*c+2*h}, 16, v{16+2*c+h}\nv_and_b32 v{41+4*c+2*h}, 0xffff0000, v{16+2*c+h}")
        a("s_waitcnt lgkmcnt(0)")
        for c in range(2):
            kf=48; vf=60; ot=68
            for i in range(11): a(f"v_lshlrev_b32 v{kf+i}, 16, v{20+i}" if c==0 else f"v_and_b32 v{kf+i}, 0xffff0000, v{20+i}")
            for i in range(8): a(f"v_lshlrev_b32 v{vf+i}, 16, v{31+i}" if c==0 else f"v_and_b32 v{vf+i}, 0xffff0000, v{31+i}")
            for t in range(8): a(f"v_mul_f32 v{ot+t}, v{kf+t}, v{43+4*c}")
            for jj in (2,1,0):
                for t in range(8): a(f"v_fmac_f32 v{ot+t}, v{kf+t+3-jj}, v{40+4*c+jj}")
            for t in range(8): a(f"v_mul_f32 v{ot+t}, v{ot+t}, v{vf+t}")
            for i in range(4): a(f"v_cvt_pk_bf16_f32 v{76+4*c+i}, v{ot+7-2*i}, v{ot+6-2*i}")
            a.iss("kvst",f"buffer_store_dwordx4 {vr(76+4*c,4)}, v5, {srd(sWS)}, s{sF if c==0 else sE_} offen sc1")
        stamp(2)
    def kvflag():
        a(f"""s_lshl_b32 s{sA}, s{sX}, 2
        s_add_u32 s{sA}, s{sA}, s{sW}
        s_lshl_b32 s{sA}, s{sA}, 5
        s_add_u32 s{sA}, s{sA}, s{sJ}
        s_lshl_b32 s{sA}, s{sA}, 3
        s_add_u32 s{sA}, s{sA}, {FKV}""")
        a.wait0(); flagstore(sA,250)
    a(f"s_cmp_lg_u32 s{sROLE}, 0\ns_cbranch_scc1 {L('Cspare')}")
    vmC=list(a.vm)
    F=[112,132]; GR=152
    CA=[172,16]; CB=[204,48]; CACC=112; AD=144
    def conv_addr():
        a(f"""s_lshr_b32 s{sA}, s{sW}, 1
        s_and_b32 s{sB_}, s{sW}, 1
        s_mul_i32 s{sCc}, s{sA}, {HCCH}
        s_lshl_b32 s{sDd}, s{sB_}, 8
        s_add_u32 s{sCc}, s{sCc}, s{sDd}
        s_add_u32 s{sCc}, s{sCc}, {HC+32+18}
        s_mul_i32 s{sE_}, s{sA}, {USZ}
        s_sub_u32 s{sE_}, s{sE_}, s{sDd}
        s_add_u32 s{sE_}, s{sE_}, {UB+512-32-192}
        v_and_b32 v12, 15, v0
        v_lshrrev_b32 v13, 4, v0
        v_add_u32 v14, 1, v12
        v_and_b32 v14, 3, v14
        v_mul_u32_u24 v14, {HCOPY-2}, v14
        v_lshl_add_u32 v14, v12, 1, v14
        v_lshlrev_b32 v13, 4, v13
        v_sub_u32 v14, v14, v13
        v_add_u32 v10, s{sCc}, v14
        v_lshl_add_u32 v11, v12, 5, v13
        v_add_u32 v11, s{sE_}, v11""")
    def conv_reads(rr):
        st=rr&1; r=[]
        for i in range(8):
            r.append(f"ds_read_b128 {vr(CB[st]+4*i,4)}, v11 offset:{512*i+64*(3-rr)}")
            r.append(f"ds_read_b64 {vr(CA[st]+4*i,2)}, v10 offset:{512*i+64*rr}")
            r.append(f"ds_read_b64 {vr(CA[st]+4*i+2,2)}, v10 offset:{512*i+64*rr+8}")
        return r
    if G1:
        a(f"""s_and_b32 s{sA}, s{sW}, 1
        s_lshr_b32 s{sB_}, s{sW}, 1
        v_and_b32 v12, 31, v0
        v_bfe_u32 v13, v0, 1, 3
        v_lshrrev_b32 v14, 5, v0
        v_xor_b32 v13, v13, v14
        v_lshlrev_b32 v13, 4, v13
        v_lshl_add_u32 v13, v12, 7, v13
        s_lshl_b32 s{sCc}, s{sA}, 13
        v_add_u32 v1, s{sCc}, v13
        v_xor_b32 v2, 32, v1
        v_xor_b32 v3, 64, v1
        v_xor_b32 v4, 96, v1""")
        a_lanepart(5,12288,13)
        a(f"""s_lshl_b32 s{sCc}, s{sB_}, 5
        v_xor_b32 v5, s{sCc}, v5
        v_xor_b32 v6, 32, v5
        s_lshl_b32 s{sCc}, s{sB_}, 8
        s_add_u32 s{sCc}, s{sCc}, 16384
        v_add_u32 v5, s{sCc}, v5
        s_lshl_b32 s{sDd}, s{sB_}, 9
        s_add_u32 s{sDd}, s{sDd}, 16384
        v_add_u32 v6, s{sDd}, v6""")
        a(f"""s_lshl_b32 s{sCc}, s{sRB}, 1
        s_add_u32 s{sCc}, s{sCc}, s{sA}
        s_lshl_b32 s{sDd}, s{sCc}, 10
        s_add_u32 s{sDd}, s{sDd}, {STATS}
        v_lshlrev_b32 v12, 4, v12
        v_add_u32 v7, s{sDd}, v12
        s_lshl_b32 s{sDd}, s{sFB}, 1
        s_add_u32 s{sDd}, s{sDd}, s{sB_}
        s_mul_i32 s{sE_}, s{sDd}, 1536
        s_add_u32 s{sE_}, s{sE_}, {CSUM}
        v_add_u32 v8, s{sE_}, v12
        s_mul_i32 s{sE_}, s{sCc}, {2*86*1024}
        s_mul_i32 s{sF}, s{sDd}, 3072
        s_add_u32 s{sE_}, s{sE_}, s{sF}
        s_add_u32 s{sE_}, s{sE_}, {HB}
        v_lshlrev_b32 v9, 4, v0
        v_add_u32 v9, s{sE_}, v9
        s_lshl_b32 s72, s{sCc}, 8
        s_lshl_b32 s{sF}, s{sDd}, 3
        s_add_u32 s72, s72, s{sF}
        s_add_u32 s72, s72, {FH}
        s_mul_i32 s73, s{sDd}, 3""")
        conv_addr()
        for i in range(96): a(f"v_mov_b32 v{16+i}, 0")
        def reads(f,s):
            b=F[f]
            if o["noreads"]: return []
            return [f"ds_read_b128 {vr(b,4)}, v{1+s}",
                    f"ds_read_b64_tr_b16 {vr(b+8,2)}, v5 offset:{s*3072}",
                    f"ds_read_b64_tr_b16 {vr(b+10,2)}, v5 offset:{s*3072+768}",
                    f"ds_read_b128 {vr(b+4,4)}, v{1+s} offset:4096",
                    f"ds_read_b64_tr_b16 {vr(b+12,2)}, v6 offset:{s*3072}",
                    f"ds_read_b64_tr_b16 {vr(b+14,2)}, v6 offset:{s*3072+768}",
                    f"ds_read_b64_tr_b16 {vr(b+16,2)}, v5 offset:{s*3072+256}",
                    f"ds_read_b64_tr_b16 {vr(b+18,2)}, v5 offset:{s*3072+768+256}"]
        def mf(t,i,A,B): acc=16+32*t+16*i; return f"v_mfma_f32_32x32x16_bf16 {vr(acc,16)}, {vr(A,4)}, {vr(B,4)}, {vr(acc,16)}"
        def kstep(f,fill,per=2):
            b=F[f]; fill=list(fill)
            for t in range(3):
                for i in range(2):
                    if not o["nomfma"]: a(mf(t,i,b+8+4*t,b+4*i))
                    for _ in range(per):
                        if fill: a(fill.pop(0))
            for x in fill: a(x)
        grl=[f"buffer_load_dwordx4 {vr(GR+4*t,4)}, v8, {srd(sWS)}, 0 offen offset:{512*t} sc1" for t in range(3)] + \
            [f"buffer_load_dwordx4 {vr(GR+12+4*i,4)}, v7, {srd(sWS)}, 0 offen offset:{512*i} sc1" for i in range(2)]
        a(f"s_mov_b32 s74, 0\ns_mov_b32 s75, 0\ns_mov_b32 s3, {SLOT}")
        stamp(3)
        a("s_barrier")
        stamp(4)
        for x in reads(0,0): a(x)
        a(f"{L('g1loop')}:")
        if P:
            a(f"s_cmp_lg_u32 s74, 1\ns_cbranch_scc1 {L('hk1')}")
            kvflag()
            a(f"{L('hk1')}:")
        a(f"s_cmp_lg_u32 s74, 6\ns_cbranch_scc1 {L('hk2')}")
        for x in grl: a(x)
        a(f"{L('hk2')}:")
        a(f"s_add_u32 s75, s75, 1\ns_cmp_eq_u32 s75, 3\ns_cselect_b32 s{sF}, {-2*SLOT}, s3\ns_cselect_b32 s75, 0, s75")
        a("s_waitcnt lgkmcnt(0)"); kstep(0,reads(1,1))
        a("s_waitcnt lgkmcnt(0)"); kstep(1,reads(0,2))
        a("s_waitcnt lgkmcnt(0)"); kstep(0,reads(1,3)+[f"v_add_u32 v{r}, s{sF}, v{r}" for r in range(1,7)],per=3)
        a(f"s_add_u32 s74, s74, 1\ns_cmp_eq_u32 s74, 8")
        a(f"s_waitcnt lgkmcnt(0)\ns_barrier\ns_cbranch_scc1 {L('g1done')}")
        kstep(1,reads(0,0))
        a(f"s_branch {L('g1loop')}")
        a(f"{L('g1done')}:")
        kstep(1,conv_reads(0),per=4)
        stamp(5)
        a.wait0()
        poll(grl,[(GR+4*t+2,GR+4*t+3) for t in range(5)],first_done=True)
        a("v_cmp_gt_u32 vcc, 32, v0")
        for t in range(3): a(f"v_mov_b32 v{GR+4*t+2}, 0\nv_mov_b32 v{GR+4*t+3}, 0")
        for i in range(2):
            g=GR+12+4*i
            a(f"""v_cndmask_b32 v{g+1}, 0, v{g}, vcc
            v_cvt_pk_bf16_f32 v{g}, -v{g+1}, -v{g+1}
            v_lshlrev_b32 v{g+2}, 16, v{g}
            v_add_f32 v{g+1}, v{g+1}, v{g+2}
            v_cvt_pk_bf16_f32 v{g+1}, -v{g+1}, -v{g+1}
            v_mov_b32 v{g+2}, 0
            v_mov_b32 v{g+3}, 0""")
        for t in range(3):
            a(f"s_add_u32 s{sA}, s73, {t}\ns_cmp_lt_u32 s{sA}, 86\ns_cselect_b32 s{sCc+t}, 0, {OOB}")
        a(f"v_add_u32 v12, {86*1024}, v9")
        def epi(t,i,buf):
            acc=16+32*t+16*i; r=[]
            for e in range(8): r.append(f"v_mul_f32 v{acc+e}, v{acc+e}, v{acc+8+e}")
            for e in range(4): r.append(f"v_cvt_pk_bf16_f32 v{buf+e}, v{acc+2*e}, v{acc+2*e+1}")
            r.append(f"buffer_store_dwordx4 {vr(buf,4)}, v{9 if i==0 else 12}, {srd(sWS)}, s{sCc+t} offen offset:{1024*t} sc1")
            return r
        order=[(t,i) for t in range(3) for i in range(2)]
        for t,i in order: a(mf(t,i,GR+4*t,GR+12+4*i))
        for n,(t,i) in enumerate(order):
            for x in epi(t,i,236+4*(n%3)): a(x)
            a.vm.append("hst")
        stamp(6)
        a(f"{L('conv')}:")
        a(f"""s_lshr_b32 s{sA}, s{sW}, 1
        s_lshl_b32 s{sA}, s{sA}, 4
        s_lshr_b32 s{sA}, s{sD}, s{sA}
        s_and_b32 s{sA}, s{sA}, 0xffff
        s_bitcmp1_b32 s{sW}, 0
        s_cselect_b32 s{sA}, 0, s{sA}
        v_and_b32 v12, 1, v0
        v_xor_b32 v12, 1, v12
        v_lshlrev_b32 v12, 4, v12
        v_lshlrev_b32 v12, v12, s{sA}
        v_bfe_u32 v13, v0, 3, 1
        v_add_u32 v13, 2, v13
        v_lshrrev_b32 v14, 4, v0
        v_cmp_eq_u32 vcc, v13, v14
        v_cndmask_b32 v12, 0, v12, vcc
        v_bfe_u32 v13, v0, 1, 2""")
        for d in range(4):
            a(f"v_cmp_eq_u32 vcc, {3-d}, v13\nv_cndmask_b32 v{AD+d}, 0, v12, vcc")
        def cm(tau,A,B,first=False):
            acc=CACC+4*tau
            return f"v_mfma_f32_16x16x32_bf16 {vr(acc,4)}, {vr(A,4)}, {vr(B,4)}, {0 if first else vr(acc,4)}"
        def hpub():
            lb=a.uniq("hp")
            a(f"s_cmp_lg_u32 s{sROLE}, 0\ns_cbranch_scc1 {lb}")
            a.wait0(); flagstore(72,250)
            a(f"{lb}:")
        if o["hpub"]==0: hpub()
        for rr in range(4):
            st=rr&1
            a("s_waitcnt lgkmcnt(0)")
            ms=[]
            if rr==0: ms+=[cm(t,AD,CB[0]+4*t,True) for t in range(8)]
            for i in range(8):
                for b in range(8-i): ms.append(cm(i+b,CA[st]+4*i,CB[st]+4*b))
            fill=conv_reads(rr+1) if rr<3 else []
            for m in ms:
                a(m)
                if fill: a(fill.pop(0))
            if o["hpub"]==rr+1: hpub()
        stamp(7)
        a(f"""s_lshr_b32 s{sA}, s{sW}, 1
        s_and_b32 s{sB_}, s{sW}, 1
        s_mul_i32 s{sCc}, s{sA}, {HCCH}
        s_add_u32 s{sCc}, s{sCc}, {HC+32+32}
        v_lshrrev_b32 v12, 3, v0
        v_and_b32 v13, 7, v0
        v_lshlrev_b32 v13, 4, v13
        v_lshl_add_u32 v12, v12, 9, v13
        v_add_u32 v12, s{sCc}, v12
        s_lshl_b32 s{sDd}, s{sW}, 2
        s_add_u32 s{sDd}, s{sDd}, {XFLAG}
        v_mov_b32 v13, s{sDd}
        v_xor_b32 v14, 4, v13
        v_mov_b32 v15, 1
        s_cmp_eq_u32 s{sB_}, 1
        s_cbranch_scc1 {L('xh1')}""")
        for half in range(2):
            if half==1: a(f"{L('xh1')}:")
            send=CACC+16*(1-half); keep=CACC+16*half
            for c in range(4): a(f"ds_write_b128 v12, {vr(send+4*c,4)} offset:{c*HCOPY+256*half}")
            a(f"s_waitcnt lgkmcnt(0)\nds_write_b32 v13, v15\ns_mov_b32 s{sCNT}, {o['polllim']*8}")
            lp=a.uniq("xl"); dn=a.uniq("xd")
            a(f"{lp}:\nds_read_b32 v16, v14\ns_waitcnt lgkmcnt(0)\nv_readfirstlane_b32 s{sE_}, v16\ns_cmp_eq_u32 s{sE_}, 1\ns_cbranch_scc1 {dn}\ns_sub_u32 s{sCNT}, s{sCNT}, 1\ns_cbranch_scc0 {lp}\n{dn}:")
            for c in range(4): a(f"ds_read_b128 {vr(16+4*c,4)}, v12 offset:{c*HCOPY+256*(1-half)}")
            a("s_waitcnt lgkmcnt(0)")
            for e in range(16): a(f"v_add_f32 v{16+e}, v{16+e}, v{keep+e}")
            if half==0: a(f"s_branch {L('xj')}")
        a(f"{L('xj')}:")
        for e in range(8): a(f"v_cvt_pk_bf16_f32 v{32+e}, v{16+2*e}, v{17+2*e}")
        a(f"""s_lshl_b32 s{sCc}, s{sX}, 5
        s_add_u32 s{sCc}, s{sCc}, s{sJ}
        s_lshl_b32 s{sCc}, s{sCc}, 1
        s_add_u32 s{sCc}, s{sCc}, s{sA}
        s_lshl_b32 s{sDd}, s{sCc}, 12
        s_lshl_b32 s{sE_}, s{sB_}, 11
        s_add_u32 s{sDd}, s{sDd}, s{sE_}
        s_add_u32 s{sDd}, s{sDd}, {YT}
        v_lshrrev_b32 v12, 5, v0
        v_lshlrev_b32 v12, 9, v12
        v_bfe_u32 v13, v0, 2, 2
        v_lshl_add_u32 v12, v13, 7, v12
        v_bfe_u32 v13, v0, 4, 1
        v_lshl_add_u32 v12, v13, 6, v12
        v_and_b32 v13, 3, v0
        v_lshl_add_u32 v12, v13, 4, v12""")
        for p in range(2):
            b=32+4*p
            a(f"v_permlane32_swap_b32 v{b}, v{b+2}\nv_permlane32_swap_b32 v{b+1}, v{b+3}")
            a.iss("yst",f"buffer_store_dwordx4 {vr(b,4)}, v12, {srd(sWS)}, s{sDd} offen offset:{1024*p} sc1")
        a(f"""s_lshl_b32 s{sE_}, s{sX}, 1
        s_add_u32 s{sE_}, s{sE_}, s{sB_}
        s_lshl_b32 s{sE_}, s{sE_}, 6
        s_and_b32 s{sCc}, s{sCc}, 63
        s_add_u32 s{sE_}, s{sE_}, s{sCc}
        s_lshl_b32 s{sE_}, s{sE_}, 3
        s_add_u32 s{sE_}, s{sE_}, {FY}""")
        a.wait0(); flagstore(sE_,250)
        stamp(8)
    elif P:
        kvflag()
    def fin_addr():
        a(f"""s_lshl_b32 s{sA}, s{sTB}, 3
        s_add_u32 s{sA}, s{sA}, s{sWAVE}
        s_lshl_b32 s{sA}, s{sA}, 3
        v_lshrrev_b32 v249, 3, v0
        v_add_u32 v249, s{sA}, v249
        v_and_b32 v248, 7, v0
        v_lshlrev_b32 v248, 4, v248
        v_lshl_add_u32 v248, v249, 10, v248
        s_lshl_b32 s{sA}, s{sDB}, 7
        v_add_u32 v248, s{sA}, v248
        v_lshlrev_b32 v249, 4, v249
        v_add_u32 v249, {STATS}, v249""")
    xload=f"buffer_load_dwordx4 v[240:243], v248, {srd(sQ)}, 0 offen"
    sload=f"buffer_load_dwordx4 v[244:247], v249, {srd(sWS)}, 0 offen sc1"
    if G2:
        a(f"{L('Cfin')}:")
        fin_addr()
        a(xload)
        a(f"""s_lshr_b32 s{sA}, s{sTB}, 4
        s_lshl_b32 s{sB_}, s{sDB}, 1
        s_add_u32 s{sA}, s{sA}, s{sB_}
        s_lshl_b32 s{sA}, s{sA}, 2
        s_add_u32 s{sA}, s{sA}, s{sW}
        s_lshl_b32 s{sA}, s{sA}, 7
        s_add_u32 s{sF}, s{sA}, {FY}
        v_and_b32 v12, 15, v0
        v_lshlrev_b32 v12, 3, v12
        s_lshl_b32 s{sA}, s{sDB}, 2
        s_add_u32 s{sA}, s{sA}, s{sW}
        s_lshl_b32 s{sA}, s{sA}, 16
        s_lshl_b32 s{sB_}, s{sTB}, 7
        s_add_u32 s{sA}, s{sA}, s{sB_}
        s_add_u32 s{sDd}, s{sA}, {YT}
        s_add_u32 s{sE_}, s{sDd}, 32768
        v_lshrrev_b32 v13, 3, v0
        v_and_b32 v14, 7, v0
        v_lshlrev_b32 v14, 4, v14
        v_lshl_add_u32 v13, v13, 12, v14
        s_lshr_b32 s{sA}, s{sW}, 1
        s_mul_i32 s{sA}, s{sA}, {USZ}
        s_and_b32 s{sB_}, s{sW}, 1
        s_mul_i32 s{sB_}, s{sB_}, 2176
        s_add_u32 s{sA}, s{sA}, s{sB_}
        s_add_u32 s{sCc}, s{sA}, {UB}
        v_lshlrev_b32 v14, 4, v0
        v_add_u32 v14, s{sCc}, v14
        v_bfe_u32 v15, v0, 2, 2
        v_lshlrev_b32 v15, 7, v15
        v_and_b32 v16, 1, v0
        v_lshl_add_u32 v15, v16, 6, v15
        v_lshrrev_b32 v16, 4, v0
        v_lshl_add_u32 v15, v16, 4, v15
        v_bfe_u32 v16, v0, 1, 1
        v_lshl_add_u32 v15, v16, 3, v15
        v_add_u32 v15, s{sCc}, v15
        v_lshlrev_b32 v16, 5, v0
        v_add_u32 v16, s{sCc}, v16""")
        poll([f"buffer_load_dwordx2 v[18:19], v12, {srd(sWS)}, s{sF} offen sc1", sload],[(18,19),(246,247)])
        stamp(9)
        a(f"buffer_load_dwordx4 v[20:23], v13, {srd(sWS)}, s{sDd} offen sc1\nbuffer_load_dwordx4 v[24:27], v13, {srd(sWS)}, s{sE_} offen sc1")
        a("s_waitcnt vmcnt(1)\nds_write_b128 v14, v[20:23]\ns_waitcnt vmcnt(0)\nds_write_b128 v14, v[24:27] offset:1024\ns_waitcnt lgkmcnt(0)")
        for i in range(4): a(f"ds_read_b64_tr_b16 {vr(28+2*i,2)}, v15 offset:{512*i}")
        a("s_waitcnt lgkmcnt(0)\nds_write_b128 v16, v[28:31]\nds_write_b128 v16, v[32:35] offset:16")
        a(f"s_branch {L('final')}")
    else:
        a(f"s_branch {L('fin0')}")

    a(f"{L('Cspare')}:")
    a.vm=list(vmC)
    if P:
        a(f"s_cmp_eq_u32 s{sROLE}, 2\ns_cbranch_scc1 {L('Cs2')}")
        colsum()
        a(f"{L('Cs2')}:")
        kvflag()
        a("s_barrier")
        a(f"s_cmp_eq_u32 s{sROLE}, 2\ns_cbranch_scc1 {L('Cbump')}")
        a(f"s_cmp_eq_u32 s{sW}, 3\ns_cbranch_scc1 {L('Cs3')}")
        a(f"s_lshl_b32 s{sA}, s{sW}, 6\nv_add_u32 v9, s{sA}, v0\nv_lshlrev_b32 v12, 2, v9\nv_add_u32 v12, 114688, v12")
        for W in range(8): a(f"ds_read_b32 v{16+W}, v12 offset:{768*W}")
        a(f"s_mul_i32 s{sA}, s{sFB}, 3072\ns_add_u32 s{sA}, s{sA}, {CSUM}\nv_lshlrev_b32 v9, 4, v9\ns_waitcnt lgkmcnt(0)")
        for W in range(1,8): a(f"v_add_f32 v16, v16, v{16+W}")
        a(f"""v_cvt_pk_bf16_f32 v17, v16, v16
        v_lshlrev_b32 v17, 16, v17
        v_sub_f32 v17, v16, v17
        v_cvt_pk_bf16_f32 v20, v16, v17
        v_cvt_pk_bf16_f32 v21, v16, v17
        v_mov_b32 v22, s{sT0}
        v_mov_b32 v23, s{sT1}
        buffer_store_dwordx4 v[20:23], v9, {srd(sWS)}, s{sA} offen sc1""")
        a(f"s_branch {L('Cs3')}")
        a(f"{L('Cbump')}:")
        if G2 and G1:
            a(f"s_cmp_lg_u32 s{sW}, 0\ns_cbranch_scc1 {L('Cs3')}")
            a(f"v_lshlrev_b32 v12, 3, v0\nv_lshlrev_b32 v13, 5, v0\ns_mov_b32 s{sDd}, {FKV}\ns_mov_b32 s{sE_}, {STATS}")
            a(f"{L('bl')}:")
            poll([f"buffer_load_dwordx2 v[18:19], v12, {srd(sWS)}, s{sDd} offen sc1", f"buffer_load_dwordx4 v[20:23], v13, {srd(sWS)}, s{sE_} offen sc1"],[(18,19),(22,23)])
            a(f"s_add_u32 s{sDd}, s{sDd}, 512\ns_add_u32 s{sE_}, s{sE_}, 2048\ns_cmp_lt_u32 s{sDd}, {FKV+8192}\ns_cbranch_scc1 {L('bl')}")
            a(f"v_mov_b32 v12, s{sT0}\ns_mov_b64 exec, 1\nbuffer_store_dword v12, off, {srd(sWS)}, 0 offset:{E_OFF} sc1\ns_mov_b64 exec, -1")
        a(f"{L('Cs3')}:")
    if G1:
        conv_addr()
        if not P: a("s_barrier")
        a("s_barrier\ns_barrier")
        for x in conv_reads(0): a(x)
        a(f"s_branch {L('conv')}")
    elif G2:
        a(f"s_branch {L('Cfin')}")
    else:
        a(f"s_branch {L('fin0')}")

    a(f"{L('Lw')}:")
    a.vm=list(vm0)
    SS=160
    if P:
        a(f"""s_lshl_b32 s{sA}, s{sX}, 5
        s_add_u32 s{sA}, s{sA}, s{sJ}
        s_lshl_b32 s{sA}, s{sA}, 2
        s_add_u32 s72, s{sA}, s{sW}
        s_lshl_b32 s{sA}, s72, 11
        v_lshlrev_b32 v9, 4, v0""")
        a.iss("xr",f"buffer_load_dwordx4 v[208:211], v9, {srd(sQ)}, s{sA} offen")
        a.iss("xr",f"buffer_load_dwordx4 v[212:215], v9, {srd(sQ)}, s{sA} offen offset:1024")
    def stats():
        a.wait("xr")
        for r in range(2):
            for i in range(4):
                a(f"v_lshlrev_b32 v{216+8*r+2*i}, 16, v{208+4*r+i}\nv_and_b32 v{217+8*r+2*i}, 0xffff0000, v{208+4*r+i}")
        def red(x0,x1):
            for d in ("row_shr:1 row_mask:0xf","row_shr:2 row_mask:0xf","row_shr:4 row_mask:0xf","row_shr:8 row_mask:0xf","row_bcast:15 row_mask:0xa","row_bcast:31 row_mask:0xc"):
                for x in (x0,x1): a(f"v_add_f32_dpp v{x}, v{x}, v{x} {d} bank_mask:0xf")
        for r in range(2): a(f"v_add_f32 v{232+4*r}, v{216+8*r}, v{217+8*r}")
        for i in range(2,8):
            for r in range(2): a(f"v_add_f32 v{232+4*r}, v{232+4*r}, v{216+8*r+i}")
        red(232,236)
        for r in range(2): a(f"v_mul_f32 v{232+4*r}, 0x3b000000, v{232+4*r}")
        for r in range(2): a(f"v_readlane_b32 s{sA+r}, v{232+4*r}, 63")
        for i in range(8):
            for r in range(2): a(f"v_subrev_f32 v{216+8*r+i}, s{sA+r}, v{216+8*r+i}")
        for r in range(2): a(f"v_mul_f32 v{233+4*r}, v{216+8*r}, v{216+8*r}")
        for i in range(1,8):
            for r in range(2): a(f"v_fmac_f32 v{233+4*r}, v{216+8*r+i}, v{216+8*r+i}")
        red(233,237)
        a(f"s_mov_b32 s{sCc}, 0x3b000000\nv_mov_b32 v216, 0x3727c5ac")
        for r in range(2): a(f"v_fma_f32 v{233+4*r}, v{233+4*r}, s{sCc}, v216")
        for r in range(2): a(f"v_rsq_f32 v{233+4*r}, v{233+4*r}\nv_mov_b32 v{234+4*r}, s{sT0}\nv_mov_b32 v{235+4*r}, s{sT1}")
        a(f"s_lshl_b32 s{sA}, s72, 5\ns_add_u32 s{sA}, s{sA}, {STATS}\ns_lshl_b64 exec, 1, 63")
        for r in range(2): a.iss("sst",f"buffer_store_dwordx4 {vr(232+4*r,4)}, off, {srd(sWS)}, s{sA} offset:{16*r} sc1")
        a("s_mov_b64 exec, -1")
    def ssm_loads():
        a(f"""s_lshl_b32 s{sA}, s{sX}, 5
        s_add_u32 s{sA}, s{sA}, s{sJ}
        s_lshl_b32 s{sA}, s{sA}, 2
        s_add_u32 s{sA}, s{sA}, s{sW}
        s_lshl_b32 s73, s{sA}, 11
        v_lshlrev_b32 v9, 4, v0""")
        for it in range(2):
            for sh in range(3):
                a.iss("ssm",f"buffer_load_dwordx4 {vr(SS+12*it+4*sh,4)}, v9, {srd(sSSM)}, s73 offen offset:{1024*it+4*sh}")
    kvpoll_load=f"buffer_load_dwordx2 v[200:201], v10, {srd(sWS)}, s74 offen sc1"
    def kvpoll_issue():
        a(f"""s_lshl_b32 s{sA}, s{sX}, 2
        s_lshr_b32 s{sB_}, s{sJ}, 3
        s_add_u32 s{sA}, s{sA}, s{sB_}
        s_lshl_b32 s{sA}, s{sA}, 8
        s_add_u32 s74, s{sA}, {FKV}
        v_and_b32 v10, 31, v0
        v_lshlrev_b32 v10, 3, v10""")
        a.iss("kvp",kvpoll_load)
    def u_loads():
        a.wait("kvp"); sv=list(a.vm)
        poll([kvpoll_load],[(200,201)],first_done=True); a.vm=sv
        a(f"s_add_u32 s{sA}, s73, {KVT}")
        for it in range(2): a.iss("u",f"buffer_load_dwordx4 {vr(192+4*it,4)}, v9, {srd(sWS)}, s{sA} offen offset:{1024*it} sc1")
    def hc_build():
        if "ssm" in a.vm: a.wait("ssm")
        a(f"""s_lshr_b32 s{sA}, s{sW}, 1
        s_and_b32 s{sB_}, s{sW}, 1
        s_mul_i32 s{sCc}, s{sA}, {HCCH}
        s_lshl_b32 s{sDd}, s{sB_}, 11
        s_add_u32 s{sCc}, s{sCc}, s{sDd}
        s_add_u32 s{sCc}, s{sCc}, {HC}
        v_add_u32 v11, s{sCc}, v9""")
        for it in range(2):
            A=SS+12*it; B=A+4; C_=A+8
            for d in range(4): a(f"v_alignbit_b32 v{184+d}, v{B+d}, v{A+d}, 16")
            for d in range(4): a(f"v_alignbit_b32 v{188+d}, v{C_+d}, v{B+d}, 16")
            for c,src in enumerate((A,184,B,188)):
                a(f"ds_write_b128 v11, {vr(src,4)} offset:{32+1024*it+c*HCOPY}")
            if it==0:
                lb=a.uniq("hz")
                a(f"s_cmp_eq_u32 s{sB_}, 1\ns_cbranch_scc1 {lb}")
                for d in range(4): a(f"v_mov_b32 v{204+d}, 0")
                a(f"v_lshlrev_b32 v202, 16, v{A}\ns_mov_b64 exec, 3")
                for c in range(4): a(f"ds_write_b128 v11, v[204:207] offset:{c*HCOPY}")
                a("s_mov_b64 exec, 1")
                a(f"ds_write_b32 v11, v202 offset:{HCOPY+28}\nds_write_b32 v11, v{A} offset:{2*HCOPY+28}\nds_write_b32 v11, v202 offset:{3*HCOPY+24}\nds_write_b32 v11, v184 offset:{3*HCOPY+28}")
                a(f"s_mov_b64 exec, -1\n{lb}:")
                a("s_waitcnt lgkmcnt(0)")
    def u_write():
        a(f"""s_lshr_b32 s{sA}, s{sW}, 1
        s_and_b32 s{sB_}, s{sW}, 1
        s_mul_i32 s{sCc}, s{sA}, {USZ}
        s_add_u32 s{sCc}, s{sCc}, {UB}
        s_lshl_b32 s{sDd}, s{sB_}, 11
        s_add_u32 s{sDd}, s{sDd}, s{sCc}
        v_add_u32 v11, s{sDd}, v9
        v_lshlrev_b32 v12, 2, v0
        s_lshl_b32 s{sB_}, s{sB_}, 8
        s_add_u32 s{sCc}, s{sCc}, s{sB_}
        v_add_u32 v12, s{sCc}, v12
        v_mov_b32 v13, 0
        ds_write_b32 v12, v13
        s_lshl_b32 s{sA}, s{sW}, 2
        s_add_u32 s{sA}, s{sA}, {XFLAG}
        v_mov_b32 v12, s{sA}
        ds_write_b32 v12, v13""")
        if "u" in a.vm: a.wait("u")
        for it in range(2): a(f"ds_write_b128 v11, {vr(192+4*it,4)} offset:{512+1024*it}")

    a(f"s_cmp_lg_u32 s{sROLE}, 0\ns_cbranch_scc1 {L('Lspare')}")
    vmL=list(a.vm)
    if G1:
        w_voffs(1,4,sW,16)
        a(f"""s_lshl_b32 s{sA}, s{sRB}, 2
        s_add_u32 s{sA}, s{sA}, s{sW}
        s_lshl_b32 s{sA}, s{sA}, 15
        v_lshrrev_b32 v16, 3, v0
        v_lshrrev_b32 v17, 4, v0
        v_xor_b32 v17, v17, v0
        v_and_b32 v17, 7, v17
        v_lshlrev_b32 v17, 4, v17
        v_lshl_add_u32 v7, v16, 10, v17
        v_add_u32 v7, s{sA}, v7
        v_xor_b32 v8, 64, v7
        v_add_u32 v8, 8192, v8
        s_lshl_b32 s75, s{sW}, 12
        s_mul_i32 s3, s{sW}, 3072
        s_add_u32 s3, s3, 16384""")
        def chunk_ops(j):
            sl=(j%3)*SLOT; ops=[]
            pre=f"s_add_u32 s{sA}, s{sC0}, {j}\ns_and_b32 s{sA}, s{sA}, 7\ns_mul_i32 s{sF}, s{sA}, {64*2752}\ns_lshl_b32 s0, s{sA}, 7\ns_add_u32 s1, s0, 16384"
            for n in range(4): ops.append((7+(n&1), sQ, "s0" if n<2 else "s1", f"s_add_u32 m0, s75, {sl+n*1024}"))
            for mat in range(2):
                for n in range(3): ops.append(((1 if mat==0 else 4)+n, sWG if mat==0 else sWU, f"s{sF}", f"s_add_u32 m0, s3, {sl+mat*12288+n*1024}"))
            return pre,ops
        def issue(j,lo,hi):
            if j>7 or lo>=hi: return
            pre,ops=chunk_ops(j)
            if lo==0: a(pre)
            for op in ops[lo:hi]:
                if o["nodma"] and j>=3: a.vm.append(f"c{j}")
                else: a.dma(f"c{j}",*op)
        S=o["S"]
        issue(0,0,10)
        ssm_loads()
        issue(1,0,S)
        tagready()
        if P: stats()
        stamp(1)
        a.wait("c0"); a("s_barrier")
        stamp(2)
        for j in range(6):
            issue(j+1,S,10);
            if j==3: kvpoll_issue()
            issue(j+2,0,S)
            if j==0: hc_build()
            if j==4: u_loads()
            a.wait(f"c{j+1}"); a("s_waitcnt lgkmcnt(0)"); stamp(13+j); a("s_barrier")
        issue(7,S,10)
        stamp(3)
    else:
        tagready()
        if P: stats()
    a(f"{L('Ljoin')}:")
    WR=80; AB=144; HR=160; NH=10
    def kslot(ks):
        if ks<12: return ("s75", (ks&3)*2048)
        if ks<17: return ("s3", (ks-12)*2048)
        return ("s3", SLOT+(ks-17)*2048)
    def wd_issue(k0,k1,tag):
        for ks in range(k0,k1):
            b,of=kslot(ks)
            for n in range(2):
                a(f"s_mov_b32 s{sA}, {(ks*16+8*n)*1024}")
                a.dma(tag,1,sWD,f"s{sA}",f"s_add_u32 m0, {b}, {of+n*1024}")
    def a_reads(ks,dst):
        b,of=kslot(ks); v=2 if b=="s75" else 3
        return [f"ds_read_b64_tr_b16 {vr(dst+4*u+2*r,2)}, v{v} offset:{of+r*1024+u*256}" for u in range(2) for r in range(2)]
    if G2:
        a(f"""s_mul_i32 s{sA}, s{sW}, {22*16*1024}
        s_lshl_b32 s{sB_}, s{sDB}, 7
        s_add_u32 s{sA}, s{sA}, s{sB_}
        v_bfe_u32 v16, v0, 2, 2
        v_lshrrev_b32 v17, 5, v0
        v_lshl_add_u32 v18, v17, 2, v16
        v_bfe_u32 v19, v0, 4, 1
        v_and_b32 v20, 3, v0
        v_lshlrev_b32 v1, 10, v18
        v_lshl_add_u32 v1, v19, 6, v1
        v_lshl_add_u32 v1, v20, 4, v1
        v_add_u32 v1, s{sA}, v1
        s_lshl_b32 s75, s{sW}, 13
        s_add_u32 s75, s75, {2*SLOT}
        s_mul_i32 s3, s{sW}, 10240
        v_lshlrev_b32 v2, 9, v17
        v_lshl_add_u32 v2, v16, 6, v2
        v_lshl_add_u32 v2, v19, 5, v2
        v_lshl_add_u32 v2, v20, 3, v2
        v_add_u32 v3, s3, v2
        v_add_u32 v2, s75, v2""")
        wd_issue(0,4,"w0")
    if G1:
        u_write()
        if "c7" in a.vm: a.wait("c7")
        a("s_waitcnt lgkmcnt(0)\ns_barrier")
    if G2:
        wd_issue(12,17,"w3")
        a.wait("w0")
        for ks in range(4):
            for x in a_reads(ks,WR+8*ks): a(x)
        a("s_waitcnt lgkmcnt(0)")
        wd_issue(4,8,"w1")
    if G1:
        a("s_barrier")
        stamp(4)
    if G2:
        wd_issue(17,22,"w4")
        a.wait("w1")
        for ks in range(4,8):
            for x in a_reads(ks,WR+8*ks): a(x)
        a("s_waitcnt lgkmcnt(0)")
        wd_issue(8,12,"w2")
        fin_addr()
        a.iss("x",xload)
        a(f"""s_mul_i32 s{sA}, s{sW}, 22
        s_mul_i32 s{sB_}, s{sA}, 43
        s_lshr_b32 s{sB_}, s{sB_}, 7
        v_and_b32 v6, 7, v0
        v_add_u32 v6, s{sB_}, v6
        v_min_u32 v6, 28, v6
        v_lshlrev_b32 v6, 3, v6
        s_lshl_b32 s{sF}, s{sTB}, 8
        s_add_u32 s{sF}, s{sF}, {FH}
        s_mul_i32 s{sB_}, s{sTB}, {2*86}
        s_add_u32 s{sA}, s{sA}, s{sB_}
        s_lshl_b32 s{sA}, s{sA}, 10
        s_add_u32 s{sA}, s{sA}, {HB}
        v_lshlrev_b32 v4, 4, v0
        v_add_u32 v4, s{sA}, v4
        v_add_u32 v5, {86*1024}, v4
        s_cmp_eq_u32 s{sW}, 3
        s_cselect_b32 s0, {OOB}, {5*4096}""")
        stamp(5)
        poll([f"buffer_load_dwordx2 v[8:9], v6, {srd(sWS)}, s{sF} offen sc1", sload],[(8,9),(246,247)])
        stamp(6)
        def h_issue(ks):
            if ks>21: return
            if ks%4==0 and ks<20: a(f"s_mov_b32 s1, {ks*1024}")
            so="s1" if ks<20 else "s0"
            for i in range(2):
                a.iss(f"h{ks}",f"buffer_load_dwordx4 {vr(HR+8*(ks%NH)+4*i,4)}, v{4+i}, {srd(sWS)}, {so} offen offset:{(ks&3)*1024} sc1")
        for ks in range(NH): h_issue(ks)
        for ks in range(22):
            A = WR+8*ks if ks<8 else AB+8*(ks&1)
            fill = a_reads(ks+1,AB+8*((ks+1)&1)) if 8<=ks+1<22 else []
            a.wait(f"h{ks}")
            if ks>=8: a("s_waitcnt lgkmcnt(0)")
            B=HR+8*(ks%NH)
            for u in range(2):
                for i in range(2):
                    acc=16+32*u+16*i
                    a(f"v_mfma_f32_32x32x16_bf16 {vr(acc,16)}, {vr(A+4*u,4)}, {vr(B+4*i,4)}, {vr(acc,16) if ks else 0}")
                    for _ in range(2):
                        if fill: a(fill.pop(0))
            h_issue(ks+NH)
        stamp(7)
        a(f"""v_and_b32 v4, 31, v0
        v_lshrrev_b32 v5, 5, v0
        v_xor_b32 v5, v5, v0
        v_and_b32 v5, 7, v5
        v_lshlrev_b32 v5, 4, v5
        v_lshl_add_u32 v4, v4, 8, v5
        v_xor_b32 v5, 32, v4
        v_xor_b32 v6, 64, v4
        v_xor_b32 v7, 96, v4""")
        for g in range(4): a(f"v_add_u32 v{4+g}, s3, v{4+g}")
        for u in range(2):
            for i in range(2):
                for g in range(4):
                    a(f"ds_write_b128 v{4+g}, {vr(16+32*u+16*i+4*g,4)} offset:{u*128+i*SLOT}")
        a(f"{L('final')}:")
        a(f"""s_lshr_b32 s{sA}, s{sWAVE}, 2
        s_mul_i32 s{sA}, s{sA}, {SLOT}
        s_lshl_b32 s{sB_}, s{sW}, 11
        s_add_u32 s{sA}, s{sA}, s{sB_}
        v_lshrrev_b32 v1, 3, v0
        v_and_b32 v2, 7, v0
        v_lshlrev_b32 v3, 1, v2
        v_xor_b32 v3, v3, v1
        v_lshlrev_b32 v3, 4, v3
        v_lshl_add_u32 v8, v1, 8, v3
        v_add_u32 v8, s{sA}, v8
        v_xor_b32 v9, 16, v8
        v_lshrrev_b32 v3, 2, v2
        v_mul_u32_u24 v10, {USZ}, v3
        v_bfe_u32 v3, v2, 1, 1
        v_mul_u32_u24 v3, 2176, v3
        v_add_u32 v10, v10, v3
        v_and_b32 v3, 1, v2
        v_lshl_add_u32 v10, v3, 4, v10
        v_lshl_add_u32 v10, v1, 5, v10
        s_lshl_b32 s{sA}, s{sWAVE}, 8
        s_add_u32 s{sA}, s{sA}, {UB}
        v_add_u32 v10, s{sA}, v10""")
        for i in range(4): a(f"v_lshlrev_b32 v{96+2*i}, 16, v{240+i}\nv_and_b32 v{97+2*i}, 0xffff0000, v{240+i}")
        a("v_mul_f32 v246, v245, v245\nv_mul_f32 v247, v246, v245\nv_mul_f32 v246, 0xbfb8aa3b, v246")
        for e in range(8): a(f"v_sub_f32 v{104+e}, v{96+e}, v244")
        for e in range(8): a(f"v_mul_f32 v{104+e}, v{104+e}, v247")
        a("s_waitcnt lgkmcnt(0)")
        stamp(10)
        a("s_barrier")
        stamp(11)
        for w in range(4):
            a(f"ds_read_b128 {vr(112+8*w,4)}, v8 offset:{10240*w}\nds_read_b128 {vr(116+8*w,4)}, v9 offset:{10240*w}")
        a("ds_read_b128 v[144:147], v10")
        a("s_waitcnt lgkmcnt(5)")
        for e in range(8): a(f"v_add_f32 v{112+e}, v{112+e}, v{120+e}")
        a("s_waitcnt lgkmcnt(1)")
        for e in range(8): a(f"v_add_f32 v{128+e}, v{128+e}, v{136+e}")
        for e in range(8): a(f"v_add_f32 v{112+e}, v{112+e}, v{128+e}")
        for e in range(8): a(f"v_mul_f32 v{120+e}, v{112+e}, v246")
        for e in range(8): a(f"v_exp_f32 v{120+e}, v{120+e}")
        a("s_waitcnt lgkmcnt(0)")
        for i in range(4): a(f"v_lshlrev_b32 v{128+2*i}, 16, v{144+i}\nv_and_b32 v{129+2*i}, 0xffff0000, v{144+i}")
        for e in range(8): a(f"v_add_f32 v{120+e}, 1.0, v{120+e}")
        for e in range(8): a(f"v_rcp_f32 v{120+e}, v{120+e}")
        for e in range(8): a(f"v_mul_f32 v{104+e}, v{104+e}, v{128+e}")
        for e in range(8): a(f"v_mul_f32 v{112+e}, v{112+e}, v{120+e}")
        for e in range(8): a(f"v_fmac_f32 v{96+e}, v{104+e}, v{112+e}")
        for i in range(4): a(f"v_cvt_pk_bf16_f32 v{148+i}, v{96+2*i}, v{97+2*i}")
        a(f"buffer_store_dwordx4 v[148:151], v248, {srd(sOUT)}, 0 offen")
    a(f"{L('fin0')}:")
    if o["stamps"]:
        a("s_waitcnt vmcnt(0)")
        stamp(12)
        a(f"s_memrealtime s[{sP1}:{sP1+1}]\ns_waitcnt lgkmcnt(0)\ns_mov_b32 s{sSTMP+23}, s{sP1}")
        a(f"s_lshl_b32 s{sA}, s2, 3\ns_add_u32 s{sA}, s{sA}, s{sWAVE}\ns_lshl_b32 s{sA}, s{sA}, 7\ns_add_u32 s{sA}, s{sA}, {STAMP}\ns_mov_b64 exec, 1")
        for i in range(26):
            a(f"v_mov_b32 v1, s{sSTMP+i}\nbuffer_store_dword v1, off, {srd(sWS)}, s{sA} offset:{4*i}")
    a("s_endpgm")
    a(f"{L('Lspare')}:")
    a.vm=list(vmL)
    if G1: ssm_loads()
    tagready()
    if P:
        stats()
        a(f"s_cmp_eq_u32 s{sROLE}, 2\ns_cbranch_scc1 {L('Ls2')}")
        colsum()
        a(f"v_lshlrev_b32 v9, 4, v0\n{L('Ls2')}:")
    if P or G1:
        a.wait0()
        a("s_barrier")
    if G1:
        kvpoll_issue()
        hc_build()
        u_loads()
        a.wait0()
    a(f"s_branch {L('Ljoin')}")
    a(f"{L('end')}:")
    a.L=hz.pad(a.L)
    return a

def bump_kernel():
    a=G("bump_kernel",1,64,vgpr=8)
    a("s_cmp_ge_u32 s2, 1\ns_cbranch_scc1 bump_end")
    a.srd(4,"ws",4096)
    a("s_waitcnt lgkmcnt(0)\nbuffer_load_dword v1, off, s[4:7], 0\ns_waitcnt vmcnt(0)\nv_add_u32 v1, 1, v1\nbuffer_store_dword v1, off, s[4:7], 0\nbump_end:")
    return a

def amp_kernel(mode, idx=0, wave=0):
    a=G("amp_kernel",1,64,vgpr=16)
    a("s_cmp_ge_u32 s2, 1\ns_cbranch_scc1 amp_end")
    a.srd(4,"ws",WS_SZ)
    a(f"v_lshlrev_b32 v1, 7, v0\ns_mov_b32 s10, {STAMP}\nv_mov_b32 v4, -1\nv_mov_b32 v5, 0\ns_waitcnt lgkmcnt(0)")
    if mode=="total":
        a(f"amp_l:\nbuffer_load_dwordx2 v[2:3], v1, s[4:7], s10 offen offset:92\ns_waitcnt vmcnt(0)\nv_max_u32 v5, v5, v2\nv_min_u32 v4, v4, v3\ns_add_u32 s10, s10, 8192\ns_cmp_lt_u32 s10, {STAMP+256*1024}\ns_cbranch_scc1 amp_l")
        a("s_mov_b32 s12, -1\ns_mov_b32 s13, 0")
        for l in range(64): a(f"v_readlane_b32 s14, v4, {l}\nv_readlane_b32 s15, v5, {l}\ns_nop 3\ns_min_u32 s12, s12, s14\ns_max_u32 s13, s13, s15")
        a("s_sub_u32 s12, s13, s12\ns_mul_i32 s12, s12, 100")
    else:
        a(f"v_lshlrev_b32 v1, 10, v0\nbuffer_load_dword v2, v1, s[4:7], s10 offen offset:{wave*128}\nbuffer_load_dword v3, v1, s[4:7], s10 offen offset:{wave*128+4*idx}\ns_waitcnt vmcnt(0)\nv_sub_u32 v4, v3, v2\ns_mov_b32 s12, 0\ns_nop 1")
        for l in range(64): a(f"v_readlane_b32 s14, v4, {l}\ns_nop 3\ns_add_u32 s12, s12, s14")
        a("s_lshr_b32 s12, s12, 6")
    a("s_min_u32 s12, s12, 1000000")
    a("s_memrealtime s[16:17]\ns_waitcnt lgkmcnt(0)\namp_s:\ns_memrealtime s[18:19]\ns_waitcnt lgkmcnt(0)\ns_sub_u32 s18, s18, s16\ns_cmp_lt_u32 s18, s12\ns_cbranch_scc1 amp_s\namp_end:")
    return a

if __name__=="__main__":
    import json
    mode=sys.argv[1]; out=sys.argv[2]; opt=json.loads(sys.argv[3]) if len(sys.argv)>3 else {}
    if mode=="split":
        emit([gen("a_kernel",True,False,False,opt),gen("b_kernel",False,True,False,opt),gen("c_kernel",False,False,True,opt),bump_kernel()],out)
    elif mode=="amp":
        am=opt.pop("amp"); opt["stamps"]=True
        emit([gen("f_kernel",True,True,True,opt),amp_kernel(*am)],out)
    elif mode=="twice":
        k=gen("f_kernel",True,True,True,opt); emit([k],out,order=[k,k])
    elif mode=="fused":
        emit([gen(NAME+"_kernel",True,True,True,opt)],out)
```
